```python
import torch

def _softmax(x, axis=-1):
    return torch.softmax(x, dim=axis)
def _gelu(x):
    return torch.nn.functional.gelu(x, approximate="tanh")
def _silu(x):
    return torch.nn.functional.silu(x)
def _sigmoid(x):
    return torch.sigmoid(x)
def _layernorm(x, axis=-1, eps=1e-5):
    m = x.mean(dim=axis, keepdim=True)
    v = x.var(dim=axis, keepdim=True, unbiased=False)
    return (x - m) / torch.sqrt(v + eps)
def _scatter_add(tgt, idx, src, axis=0):
    return tgt.clone().index_add_(axis, idx, src)
def _segment_sum(src, seg, n):
    out = torch.zeros((n,) + src.shape[1:], dtype=src.dtype)
    return out.index_add_(0, seg, src)
def _pad(x, pw):
    flat = tuple(v for pair in reversed(pw) for v in pair)
    return torch.nn.functional.pad(x, flat)

kernel_name = 'parallel_sum__spectral_gfnet__glu_gated_swiglu__prompt'

def setup_inputs():

    _w = (lambda a: (lambda t: t.to(torch.bfloat16) if t.is_floating_point() else t)(torch.as_tensor(a)))
    def _A_setup():
        B, S, D = 1, 2048, 448
        Df = D // 2 + 1
        return {
            "x": _w((lambda *s: torch.randn(*s, dtype=torch.bfloat16) * 0.05)(B, S, D)),
            "w_r": _w((lambda *s: torch.randn(*s, dtype=torch.bfloat16) * 0.4)(S, Df) * 0.02),
            "w_i": _w((lambda *s: torch.randn(*s, dtype=torch.bfloat16) * 0.4)(S, Df) * 0.02),
        }
    _A_in = _A_setup()

    def _B_setup():
        B, S, D, F = 1, 2048, 448, 1792
        return {
            "x": _w((lambda *s: torch.randn(*s, dtype=torch.bfloat16) * 0.05)(B, S, D)),
            "w1": _w((lambda *s: torch.randn(*s, dtype=torch.bfloat16) * 0.2)(D, F) * (2.0 / D) ** 0.5),
            "w3": _w((lambda *s: torch.randn(*s, dtype=torch.bfloat16) * 0.2)(D, F) * (2.0 / D) ** 0.5),
            "w2": _w((lambda *s: torch.randn(*s, dtype=torch.bfloat16) * 0.2)(F, D) * (2.0 / F) ** 0.5),
        }
    _B_in = _B_setup()

    return {
        "A_x": _A_in["x"],
        "A_w_r": _A_in["w_r"],
        "A_w_i": _A_in["w_i"],
        "B_x": _B_in["x"],
        "B_w1": _B_in["w1"],
        "B_w3": _B_in["w3"],
        "B_w2": _B_in["w2"],
    }

def reference(A_x, A_w_r, A_w_i, B_x, B_w1, B_w3, B_w2):
    def _A_ref(x, w_r, w_i):
        B, S, D = x.shape
        X = (lambda x, axes=(-2,-1): torch.fft.rfft2(x.float(), dim=axes))(x, axes=(-2, -1))
        W = w_r + 1j * w_i
        X = X * W
        y = (lambda x, s, axes=(-2,-1): torch.fft.irfft2(x, s=s, dim=axes).to(torch.bfloat16))(X, (S, D), axes=(-2, -1))
        return y

    def _B_ref(x, w1, w3, w2):
        gate = torch.einsum("bsd,df->bsf", x, w1)
        up = torch.einsum("bsd,df->bsf", x, w3)
        h = _silu(gate) * up
        out = torch.einsum("bsf,fd->bsd", h, w2)
        return out

    x = A_x
    xn = _layernorm(x, axis=-1)
    return x + _A_ref(xn, A_w_r, A_w_i) + _B_ref(xn, B_w1, B_w3, B_w2)
```

```python
import re

class Ins:
    __slots__ = ('text', 'tag', 'kind', 'arg')
    def __init__(self, text, tag=None, kind='ins', arg=None):
        self.text, self.tag, self.kind, self.arg = text, tag, kind, arg
    def __repr__(self): return f'<{self.kind}:{self.text}>'

def I(text, tag=None): return Ins(text, tag)
def WAITVM(*tags): return Ins('', kind='waitvm', arg=tags)
def WAITLG(*tags): return Ins('', kind='waitlg', arg=tags)
def WAITREG(*regs): return Ins('', kind='waitreg', arg=regs)
def LABEL(n): return Ins(n + ':', kind='label')
def RAW(t): return Ins(t, kind='raw')
def CMT(t): return Ins('; ' + t, kind='raw')
def DRAINED(): return Ins('', kind='drained')

_reg = re.compile(r'^-?\|?(?:abs\()?([vas])(?:(\d+)|\[(\d+):(\d+)\])\)?\|?$')
def regs_of(op):
    op = op.strip()
    if op in ('vcc', 'vcc_lo', 'vcc_hi'): return [('s', 'vcc')]
    if op in ('exec', 'exec_lo', 'exec_hi'): return [('s', 'exec')]
    if op == 'm0': return [('s', 'm0')]
    m = _reg.match(op)
    if not m: return []
    f = m.group(1)
    if m.group(2) is not None: return [(f, int(m.group(2)))]
    return [(f, r) for r in range(int(m.group(3)), int(m.group(4)) + 1)]

TRANS = ('v_exp_f', 'v_log_f', 'v_rcp_', 'v_rsq_', 'v_sqrt_', 'v_sin_', 'v_cos_')
def parse(text):
    t = text.split(';')[0].strip()
    sp = t.split(None, 1)
    op = sp[0]
    rest = sp[1] if len(sp) > 1 else ''
    ops, depth, cur = [], 0, ''
    for ch in rest:
        if ch in '[(': depth += 1
        if ch in '])': depth -= 1
        if ch == ',' and depth == 0: ops.append(cur.strip()); cur = ''
        else: cur += ch
    if cur.strip(): ops.append(cur.strip())
    mods = ''
    if ops:
        last = ops[-1].split(None, 1)
        ops[-1] = last[0]
        mods = last[1] if len(last) > 1 else ''
    R = [regs_of(o) for o in ops]
    d = dict(op=op, cls='other', dst=[], src=[], srcC=[], srcAB=[], mods=mods, data=[])
    flat = lambda l: [x for y in l for x in y]
    if op.startswith('v_mfma'):
        d.update(cls='mfma', dst=R[0], srcAB=R[1] + R[2], srcC=R[3], src=flat(R[1:]))
    elif op.startswith('v_cmp'):
        d.update(cls='valu', dst=R[0], src=flat(R[1:]))
    elif op.startswith(('v_swap', 'v_permlane')):
        d.update(cls='valu', dst=R[0] + R[1], src=R[0] + R[1])
    elif op.startswith(('v_add_co', 'v_addc_co', 'v_sub_co')):
        d.update(cls='valu', dst=R[0] + R[1], src=flat(R[2:]))
    elif op.startswith('v_'):
        src = flat(R[1:])
        if op.startswith(('v_fmac', 'v_dot2c', 'v_writelane')) or 'UNUSED_PRESERVE' in mods or '_dpp' in op: src = src + R[0]
        if op.startswith('v_cndmask') and len(R) == 3: src = src + [('s', 'vcc')]
        d.update(cls='valu', dst=R[0], src=src)
        if op.startswith('v_dot2'):
            d['srcAB'] = R[1] + R[2]
    elif op.startswith(('buffer_load', 'global_load')):
        if ' lds' in ' ' + mods or '_lds_' in op:
            d.update(cls='vmem', src=flat(R) + [('s', 'm0')], dma=True)
        else:
            src = flat(R[1:])
            if 'd16' in op: src = src + R[0]
            d.update(cls='vmem', dst=R[0], src=src)
    elif op.startswith('buffer_store'):
        d.update(cls='vmem', src=flat(R), data=R[0], store=True)
    elif op.startswith('global_store'):
        d.update(cls='vmem', src=flat(R), data=R[1], store=True)
    elif op.startswith(('ds_read', 'ds_bpermute', 'ds_swizzle', 'ds_permute')):
        d.update(cls='ds', dst=R[0], src=flat(R[1:]))
    elif op.startswith('ds_write'):
        d.update(cls='ds', src=flat(R))
    elif op.startswith(('s_load', 's_memtime', 's_memrealtime')):
        d.update(cls='smem', dst=R[0], src=flat(R[1:]))
    elif op.startswith(('s_cmp', 's_cbranch', 's_branch', 's_barrier', 's_waitcnt', 's_nop', 's_sleep', 's_endpgm', 's_setprio', 's_bitcmp')):
        d.update(cls='salu', src=flat(R))
    elif op.startswith('s_'):
        dst = R[0]
        if 'saveexec' in op: dst = dst + [('s', 'exec')]
        d.update(cls='salu', dst=dst, src=flat(R[1:]))
    else:
        raise ValueError('unknown instruction: ' + text)
    d['trans'] = op.startswith(TRANS)
    return d

class Finalizer:
    def __init__(self):
        self.out = []
        self.vm = []
        self.lg = []
        self.smem = []
        self.hist = []
        self.seen_vm = set(); self.seen_lg = set()
        self.nnop = 0; self.nins = 0; self.stats = {}
    def emit(self, text, p=None, states=1):
        self.out.append('    ' + text)
        self.hist.append((p or parse(text), states))
        if len(self.hist) > 40: self.hist.pop(0)
        self.nins += 1
    def wait(self, vm=None, lg=None):
        parts = []
        if vm is not None and vm < len(self.vm):
            assert vm <= 63
            parts.append(f'vmcnt({vm})'); self.vm = self.vm[len(self.vm) - vm:]
        if lg is not None and (lg < len(self.lg) or (lg == 0 and self.smem)):
            if self.smem: lg = 0
            lg = min(lg, 15)
            parts.append(f'lgkmcnt({lg})'); self.lg = self.lg[len(self.lg) - lg:] if lg else []
            if lg == 0: self.smem = []
        if parts: self.emit('s_waitcnt ' + ' '.join(parts))
    def need(self, regs):
        regs = set(regs); vm = lg = None
        for i, o in enumerate(self.vm):
            if regs & o['dst']: vm = len(self.vm) - 1 - i
        for i, o in enumerate(self.lg):
            if regs & o['dst']: lg = len(self.lg) - 1 - i
        if regs & set(self.smem): lg = 0
        return vm, lg
    def hazard(self, p):
        need = 0; dist = 0
        S = set(p['src']); D = set(p['dst']); cls = p['cls']; op = p['op']
        for q, st in reversed(self.hist):
            qd = set(q['dst']); req = 0
            if q['cls'] == 'valu':
                vd = {r for r in qd if r[0] in 'va'}; sd = qd - vd
                isdot = q['op'].startswith('v_dot2')
                if cls == 'mfma' and vd & S: req = max(req, 3 if isdot else 2)
                if cls == 'valu':
                    if q['trans'] and not p['trans'] and vd & S: req = max(req, 1)
                    if op.startswith(('v_readlane', 'v_readfirstlane')) and vd & S: req = max(req, 1)
                    if (op.startswith('v_permlane') or '_dpp' in op or 'quad_perm' in p['mods'] or 'row_' in p['mods']) and vd & S: req = max(req, 2)
                    if sd & S: req = max(req, 4 if op.startswith(('v_readlane', 'v_writelane')) else 2)
                    if ('dst_sel' in q['mods'] or 'op_sel:' in q['mods']) and not q['op'].startswith('v_pk') and vd & (S | D): req = max(req, 1)
                if isdot and cls != 'salu':
                    if op == q['op']:
                        if vd & set(p['srcAB']): req = max(req, 3)
                    elif vd & (S | D): req = max(req, 3)
                if cls == 'vmem' and sd & S: req = max(req, 5)
                if cls == 'salu' and sd & S: req = max(req, 1)
            elif q['cls'] == 'mfma':
                if cls == 'mfma':
                    if qd & set(p['srcAB']): req = max(req, 12)
                    if qd & set(p['srcC']) and q['dst'] != p['srcC']: req = max(req, 10)
                    if qd & D and q['dst'] != p['srcC']: req = max(req, 10)
                elif cls in ('valu', 'vmem', 'ds'):
                    if qd & (S | D): req = max(req, 12)
                    if cls == 'valu' and set(q['srcC']) & D: req = max(req, 7)
            elif q['cls'] == 'salu':
                if ('s', 'm0') in qd and p.get('dma'): req = max(req, 1)
            elif q['cls'] == 'vmem' and q.get('store') and len(q['data']) >= 3:
                if set(q['data']) & D: req = max(req, 2)
            need = max(need, req - dist)
            dist += st
            if dist > 20: break
        return need
    def run(self, stream):
        for ins in stream:
            k = ins.kind
            if k in ('label', 'raw'):
                self.out.append(ins.text); continue
            if k == 'drained':
                self.vm = []; self.lg = []; self.smem = []; continue
            if k == 'waitvm':
                n = None
                for t in ins.arg: assert t in self.seen_vm, f'wait on unissued vm tag {t}'
                for i, o in enumerate(self.vm):
                    if o['tag'] in ins.arg: n = len(self.vm) - 1 - i
                self.wait(vm=n); continue
            if k == 'waitlg':
                n = None
                for t in ins.arg: assert t in self.seen_lg, f'wait on unissued lds tag {t}'
                for i, o in enumerate(self.lg):
                    if o['tag'] in ins.arg: n = len(self.lg) - 1 - i
                self.wait(lg=n); continue
            if k == 'waitreg':
                vm, lg = self.need([r for o in ins.arg for r in regs_of(o)])
                self.wait(vm, lg); continue
            p = parse(ins.text)
            if p['op'] == 's_waitcnt':
                m = re.search(r'vmcnt\((\d+)\)', ins.text)
                if m: n = int(m.group(1)); self.vm = self.vm[max(0, len(self.vm) - n):] if n else []
                m = re.search(r'lgkmcnt\((\d+)\)', ins.text)
                if m:
                    n = int(m.group(1)); self.lg = self.lg[max(0, len(self.lg) - n):] if n else []
                    if n == 0: self.smem = []
                self.emit(ins.text, p); continue
            vm, lg = self.need(p['src'] + p['dst'])
            self.wait(vm, lg)
            if p['cls'] == 'vmem' and len(self.vm) >= 63: self.wait(vm=62)
            if p['cls'] == 'ds' and len(self.lg) >= 15 and False: pass
            n = self.hazard(p)
            while n > 0:
                c = min(n, 16); self.emit(f's_nop {c-1}', states=c); n -= c; self.nnop += 1
            st = 1
            if p['op'] == 's_nop': st = int(ins.text.split()[1]) + 1
            self.emit(ins.text, p, st)
            self.stats[p['cls']] = self.stats.get(p['cls'], 0) + 1
            if p['cls'] == 'vmem':
                self.vm.append(dict(tag=ins.tag, dst=set(p['dst']))); self.seen_vm.add(ins.tag)
            elif p['cls'] == 'ds':
                self.lg.append(dict(tag=ins.tag, dst=set(p['dst']))); self.seen_lg.add(ins.tag)
            elif p['cls'] == 'smem':
                self.smem += p['dst']
        return self.out

def cost(ins):
    if ins.kind in ('label', 'raw', 'drained'): return 0
    if ins.kind != 'ins': return 1
    return 2 if ins.text.startswith(TRANS) else 1

def weave(mfmas, fixed, fill, budget=6, start=0):
    out = []; fill = list(fill); pos = 0
    for i, m in enumerate(mfmas):
        out.append(m)
        f = fixed.get(i, []) if isinstance(fixed, dict) else fixed[i]
        out += f
        left = budget - sum(cost(x) for x in f)
        if i >= start:
            while pos < len(fill) and cost(fill[pos]) <= left:
                left -= cost(fill[pos]); out.append(fill[pos]); pos += 1
    return out, fill[pos:]
```

```python
import sys, struct, math
from asmlib import *

NAME = 'parallel_sum__spectral_gfnet__glu_gated_swiglu__prompt_kernel'
XB = 2048 * 448 * 2
WB = 2048 * 225 * 2
W1B = 448 * 1792 * 2
WS_E = 0
WS_FX = 4096
WS_FH = 0x20000
WS_FY = 0x70000
WS_ST = 0x80000
WS_X1 = 0x100000
WS_Y = 0x300000
WS_H = 0x500000
WS_SIZE = 0x500000 + 64 * 2 * 4 * 14 * 1024
POLL_MAX = 400000
LOG2E = 1.4426950408889634

def fhex(x): return '0x%08x' % struct.unpack('<I', struct.pack('<f', x))[0]
def v(r, n=1): return f'v{r}' if n == 1 else f'v[{r}:{r+n-1}]'
def a(r, n=1): return f'a{r}' if n == 1 else f'a[{r}:{r+n-1}]'
def s(r, n=1): return f's{r}' if n == 1 else f's[{r}:{r+n-1}]'
def idx0(r): return 8 * (r // 4) + r % 4

sX, sWA, sWB, sWS, sOUT = 24, 28, 32, 36, 40
sW, sI, sJ, sP, sN, sNONCE = 44, 45, 46, 47, 48, 49
sT = 50
sLB = 60
sRB = 61
sSO = 62
sK4, sK8, sK12 = 63, 64, 65
sCNT = 66
sONES, sTWO = 67, 68
sST = 70

class G:
    def __init__(self, stamps=False):
        self.stamps = stamps; self.nst = 0; self.uid = 0
    def stamp(self):
        if not self.stamps: return []
        r = sST + 2 * self.nst; self.nst += 1
        assert r + 1 <= 101
        return [I(f's_memrealtime {s(r,2)}')]
    def dump_stamps(self, vt):
        if not self.stamps: return []
        o = [I('s_waitcnt lgkmcnt(0)'),
             I(f's_lshl_b32 s{sT}, s2, 2'), I(f's_add_u32 s{sT}, s{sT}, s{sW}'), I(f's_lshl_b32 s{sT}, s{sT}, 6'),
             I(f's_add_u32 s{sT}, s{sT}, {WS_ST}'), I(f'v_mov_b32 {v(vt)}, 0')]
        for k in range(self.nst):
            o += [I(f'v_mov_b32 {v(vt+1)}, s{sST+2*k}'),
                  I(f'buffer_store_dword {v(vt+1)}, {v(vt)}, {s(sWS,4)}, s{sT} offen offset:{4*k}')]
        return o
    def poll(self, vaddr, vdst, ssoff, pre_issued_tag=None):
        self.uid += 1; u = self.uid
        o = []
        if pre_issued_tag is None:
            o += [I(f'buffer_load_dword {v(vdst)}, {v(vaddr)}, {s(sWS,4)}, {ssoff} offen sc1')]
        o += [I(f'v_cmp_eq_u32 vcc, s{sNONCE}, {v(vdst)}'), I('s_cmp_eq_u64 vcc, -1'), I(f's_cbranch_scc1 L_pd{u}'),
              I(f's_mov_b32 s{sCNT}, 0'),
              LABEL(f'L_pl{u}'),
              RAW(f'    buffer_load_dword {v(vdst)}, {v(vaddr)}, {s(sWS,4)}, {ssoff} offen sc1'),
              RAW(f'    s_add_u32 s{sCNT}, s{sCNT}, 1'), RAW(f'    s_cmp_gt_u32 s{sCNT}, {POLL_MAX}'),
              RAW('    s_waitcnt vmcnt(0)'),
              RAW(f'    s_cbranch_scc1 L_pd{u}'),
              RAW(f'    v_cmp_eq_u32 vcc, s{sNONCE}, {v(vdst)}'), RAW('    s_nop 1'),
              RAW('    s_cmp_eq_u64 vcc, -1'), RAW(f'    s_cbranch_scc0 L_pl{u}'),
              LABEL(f'L_pd{u}')]
        return o
    def flag(self, vzero, vtmp_nonce, soff_expr):
        return soff_expr + [I('s_mov_b64 exec, 1'),
                I(f'buffer_store_dword {v(vtmp_nonce)}, {v(vzero)}, {s(sWS,4)}, s{sSO} offen sc1'),
                I('s_mov_b64 exec, -1')]

    def prologue(self):
        o = [I('s_cmp_ge_u32 s2, 256'), I('s_cbranch_scc1 L_end')]
        o += self.stamp()
        o += [I('s_load_dwordx16 s[4:19], s[0:1], 0'), I('s_load_dwordx4 s[20:23], s[0:1], 64'),
              I('v_lshrrev_b32 v1, 6, v0'), I('v_and_b32 v0, 63, v0'), I(f'v_readfirstlane_b32 s{sW}, v1'),
              I(f's_lshr_b32 s{sT}, s2, 3'), I(f's_and_b32 s{sT+1}, s2, 7')]
        o += [I(f's_lshl_b32 s{sT+2}, s{sT}, 2'), I(f's_add_u32 s{sT+2}, s{sT+2}, s{sW}'),
              I(f's_min_u32 s{sT+2}, s{sT+2}, (L_codeend-L_pc)/1024'), I(f's_lshl_b32 s{sT+2}, s{sT+2}, 10'),
              I(f's_getpc_b64 {s(sT+4,2)}'), LABEL('L_pc'),
              I(f'v_lshlrev_b32 v1, 4, v0'), I(f'v_add_u32 v2, s{sT+2}, v1'),
              I(f'global_load_dwordx4 v[252:255], v2, {s(sT+4,2)}'),
              I(f's_cmp_ge_u32 s{sT}, 28'), I('s_cbranch_scc1 L_fft')]
        return o
    def srd(self, d, p, nbytes):
        return [I(f's_mov_b32 s{d}, s{p}'), I(f's_mov_b32 s{d+1}, s{p+1}'), I(f's_mov_b32 s{d+2}, {nbytes}'), I(f's_mov_b32 s{d+3}, 0x20000')]
    def nonce_load(self): return [I(f's_load_dword s{sNONCE}, s[22:23], {WS_E}')]
    def nonce_fin(self): return [I(f's_mul_i32 s{sNONCE}, s{sNONCE}, 0x9e3779b1'), I(f's_add_u32 s{sNONCE}, s{sNONCE}, 0x7f4a7c15')]

    def gemm(self):
        o = []
        L, L16 = 0, 1
        A_, H_ = 2, 3
        DV = 4
        D2 = 8
        TW = 12
        T2 = 16
        IK2, NON, ZER, HST = 18, 19, 20, 21
        FL, FLD = 22, 23
        X, ACC0, T = 24, 136, 200
        ACC1, SP, AB, W2A = 0, 64, 112, 144
        ABUF = [AB, AB + 16, SP]
        LDS_C, LDS_BN, LDS_R = 114688, 143360, 151552
        t0 = sT
        o += [CMT('---- GEMM workgroup: tile coordinates')]
        o += [I(f's_mul_i32 s{t0+2}, s{t0}, 37'), I(f's_lshr_b32 s{t0+2}, s{t0+2}, 8'),
              I(f's_mul_i32 s{t0+3}, s{t0+2}, 7'), I(f's_sub_u32 s{sN}, s{t0}, s{t0+3}'),
              I(f's_lshr_b32 s{t0+3}, s{t0+1}, 1'), I(f's_lshl_b32 s{t0+3}, s{t0+3}, 2'), I(f's_add_u32 s{sI}, s{t0+3}, s{t0+2}'),
              I(f's_and_b32 s{t0+3}, s{t0+1}, 1'), I(f's_mul_i32 s{t0+3}, s{t0+3}, 7'), I(f's_add_u32 s{sJ}, s{t0+3}, s{sN}'),
              I(f's_lshl_b32 s{t0+3}, s{t0+1}, 2'), I(f's_add_u32 s{sP}, s{t0+3}, s{t0+2}'),
              I(f's_mul_i32 s{sLB}, s{sW}, 28672'), I(f's_mul_i32 s{sRB}, s{sW}, 12288'), I(f's_add_u32 s{sRB}, s{sRB}, {LDS_C}'),
              I(f's_mov_b32 s{sK4}, 4096'), I(f's_mov_b32 s{sK8}, 8192'), I(f's_mov_b32 s{sK12}, 12288'),
              I(f's_mov_b32 s{sONES}, 0x3f803f80'),
              I(f'v_and_b32 {v(A_)}, 31, {v(L)}'), I(f'v_lshrrev_b32 {v(H_)}, 5, {v(L)}'), I(f'v_mov_b32 {v(ZER)}, 0')]
        q0, q1, q2 = T, T + 1, T + 2
        o += [I(f'v_lshrrev_b32 {v(q0)}, 3, {v(L)}'), I(f'v_and_b32 {v(q1)}, 7, {v(L)}'),
              I(f'v_lshrrev_b32 {v(q2)}, 1, {v(q0)}'), I(f'v_xor_b32 {v(q2)}, {v(q2)}, {v(q1)}'), I(f'v_lshlrev_b32 {v(q2)}, 4, {v(q2)}'),
              I(f'v_mul_u32_u24 {v(DV)}, {64*896}, {v(q0)}'),
              I(f's_lshl_b32 s{t0+3}, s{sI}, 2'), I(f's_add_u32 s{t0+3}, s{t0+3}, s{sW}'),
              I(f's_mul_i32 s{t0+4}, s{t0+3}, 896'),
              I(f'v_add_u32 {v(DV)}, s{t0+4}, {v(DV)}'),
              I(f'v_add_u32 {v(DV+1)}, {458752-1024}, {v(DV)}'), I(f'v_add_u32 {v(DV+2)}, {2*(458752-1024)}, {v(DV)}'),
              I(f'v_add_u32 {v(DV+3)}, {3*(458752-1024)}, {v(DV)}'),
              I(f'v_add_u32 {v(DV)}, {v(DV)}, {v(q2)}'), I(f'v_add_u32 {v(DV+2)}, {v(DV+2)}, {v(q2)}'),
              I(f'v_xor_b32 {v(q2)}, 64, {v(q2)}'),
              I(f'v_add_u32 {v(DV+1)}, {v(DV+1)}, {v(q2)}'), I(f'v_add_u32 {v(DV+3)}, {v(DV+3)}, {v(q2)}')]
        kf, n0, B, Aj, tt = T + 4, T + 5, T + 8, T + 6, T + 16
        def red(dst, src):
            return [I(f'v_fmaak_f32 {v(tt)}, {v(src)}, {v(T+7)}, {fhex(0.5/448)}'), I(f'v_floor_f32 {v(tt)}, {v(tt)}'),
                    I(f'v_fmamk_f32 {v(dst)}, {v(tt)}, {fhex(-448.0)}, {v(src)}'), I(f'v_mul_f32 {v(dst)}, {v(dst)}, {v(T+7)}')]
        cg = [I(f'v_mov_b32 {v(T+7)}, {fhex(1.0/448)}'),
              I(f'v_lshrrev_b32 {v(kf)}, 1, {v(A_)}'), I(f's_lshl_b32 s{t0+4}, s{sJ}, 4'), I(f's_add_u32 s{t0+4}, s{t0+4}, 1'),
              I(f'v_add_u32 {v(kf)}, s{t0+4}, {v(kf)}'),
              I(f's_mul_i32 s{t0+4}, s{sW}, 112'),
              I(f'v_lshl_add_u32 {v(n0)}, {v(H_)}, 3, s{t0+4}'), I(f'v_mul_u32_u24 {v(n0)}, {v(n0)}, {v(kf)}'),
              I(f'v_and_b32 {v(tt)}, 1, {v(L)}'), I(f'v_mul_u32_u24 {v(tt)}, 112, {v(tt)}'), I(f'v_add_u32 {v(n0)}, {v(n0)}, {v(tt)}'),
              I(f'v_cvt_f32_u32 {v(kf)}, {v(kf)}'), I(f'v_cvt_f32_u32 {v(n0)}, {v(n0)}')]
        for t in range(1, 8):
            cg += [I(f'v_mul_f32 {v(tt+1)}, {fhex(float(t))}, {v(kf)}')] + red(B + t, tt + 1)
        cw = T + 3
        cg += [I(f's_mul_i32 s{t0+4}, s{sW}, 7168'), I(f's_add_u32 s{t0+4}, s{t0+4}, {LDS_C}'), I(f'v_add_u32 {v(cw)}, s{t0+4}, {v(L16)}')]
        for jj in range(7):
            cg += [I(f'v_fmamk_f32 {v(tt+1)}, {v(kf)}, {fhex(16.0*jj)}, {v(n0)}')] + red(Aj, tt + 1)
            ph = T + 20; ob = T + 28 + 4 * (jj % 2)
            cg += [I(f'v_add_f32 {v(ph+t)}, {v(Aj)}, {v(B+t)}') for t in range(1, 8)]
            cg += [I(f'v_cos_f32 {v(ph)}, {v(Aj)}')] + [I(f'v_cos_f32 {v(ph+t)}, {v(ph+t)}') for t in range(1, 8)]
            cg += [I(f'v_cvt_pk_bf16_f32 {v(ob+u)}, {v(ph+2*u)}, {v(ph+2*u+1)}') for u in range(4)]
            cg += [I(f'ds_write_b128 {v(cw)}, {v(ob,4)} offset:{jj*1024}', tag='cw')]
        split = 75
        o += cg[:split]
        o += [I('s_waitcnt lgkmcnt(0)')] + self.srd(sX, 4, XB)
        for t in range(7):
            o += [I(f's_add_u32 m0, s{sLB}, {t*4096}'), I(f's_mov_b32 s{sSO}, {t*128}')]
            o += [I(f'buffer_load_dwordx4 {v(DV+g)}, {s(sX,4)}, s{sSO} offen offset:{g*1024} lds', tag=f'x{t}') for g in range(4)]
        o += self.stamp()
        o += self.nonce_load()
        o += [I(f's_cmp_ge_u32 s{sW}, 2'), I(f's_cselect_b32 s{sWA}, s14, s12'), I(f's_cselect_b32 s{sWA+1}, s15, s13'),
              I(f's_mov_b32 s{sWA+2}, {W1B}'), I(f's_mov_b32 s{sWA+3}, 0x20000')]
        o += self.srd(sWB, 16, W1B) + self.srd(sWS, 22, WS_SIZE) + self.srd(sOUT, 18, XB)
        o += cg[split:]
        o += [I(f'v_lshlrev_b32 {v(q2)}, 1, {v(q0)}'), I(f'v_and_b32 {v(q2)}, 4, {v(q2)}'), I(f'v_xor_b32 {v(q2)}, {v(q2)}, {v(q1)}'),
              I(f'v_lshlrev_b32 {v(q2)}, 4, {v(q2)}'),
              I(f's_and_b32 s{t0+4}, s{sW}, 1'), I(f's_mul_i32 s{t0+4}, s{t0+4}, {8*3584}'), I(f's_lshl_b32 s{t0+5}, s{sJ}, 8'),
              I(f's_add_u32 s{t0+4}, s{t0+4}, s{t0+5}'),
              I(f'v_mul_u32_u24 {v(DV)}, 3584, {v(q0)}'), I(f'v_add3_u32 {v(DV)}, {v(DV)}, {v(q2)}, s{t0+4}')]
        o += [I(f'v_add_u32 {v(DV+g)}, {g*(57344-1024)}, {v(DV)}') for g in (1, 2, 3)]
        o += [I(f's_mul_i32 s{t0+4}, s{sW}, {16*896}'), I(f's_lshl_b32 s{t0+5}, s{sN}, 7'), I(f's_add_u32 s{t0+4}, s{t0+4}, s{t0+5}'),
              I(f'v_mul_u32_u24 {v(D2)}, 896, {v(q0)}'), I(f'v_add3_u32 {v(D2)}, {v(D2)}, {v(q2)}, s{t0+4}')]
        o += [I(f'v_add_u32 {v(D2+g)}, {(g//2)*114688 + (g%2)*7168 - g*1024}, {v(D2)}') for g in (1, 2, 3)]
        o += [I(f'v_bfe_u32 {v(q0)}, {v(L)}, 2, 2'), I(f'v_bfe_u32 {v(q1)}, {v(L)}, 4, 1'), I(f'v_lshlrev_b32 {v(q1)}, 5, {v(q1)}'),
              I(f'v_and_b32 {v(q2)}, 3, {v(L)}'), I(f'v_lshl_add_u32 {v(q1)}, {v(q2)}, 3, {v(q1)}'),
              I(f'v_and_b32 {v(q2)}, 2, {v(q0)}'), I(f'v_lshl_add_u32 {v(q1)}, {v(q2)}, 5, {v(q1)}'),
              I(f'v_lshl_add_u32 {v(q1)}, {v(q0)}, 7, {v(q1)}'),
              I(f'v_mul_u32_u24 {v(TW)}, 28672, {v(H_)}'), I(f'v_add_u32 {v(TW)}, {v(TW)}, {v(q1)}'),
              I(f'v_xor_b32 {v(TW+1)}, 64, {v(TW)}'),
              I(f'v_add_u32 {v(TW+2)}, 57344, {v(TW)}'), I(f'v_add_u32 {v(TW+3)}, 57344, {v(TW+1)}'),
              I(f'v_lshl_add_u32 {v(T2)}, {v(H_)}, 9, {v(q1)}'), I(f'v_add_u32 {v(T2)}, s{sRB}, {v(T2)}'),
              I(f'v_xor_b32 {v(T2+1)}, 64, {v(T2)}')]
        XR = T + 40
        o += [I(f'v_bfe_u32 {v(q0)}, {v(A_)}, 1, 3'), I(f'v_xor_b32 {v(q0)}, {v(q0)}, {v(H_)}'), I(f'v_lshlrev_b32 {v(q0)}, 4, {v(q0)}'),
              I(f'v_lshl_add_u32 {v(q0)}, {v(A_)}, 7, {v(q0)}'), I(f'v_add_u32 {v(XR)}, s{sLB}, {v(q0)}')]
        o += [I(f'v_xor_b32 {v(XR+u)}, {32*u}, {v(XR)}') for u in (1, 2, 3)]
        o += [I('s_waitcnt lgkmcnt(0)'), I('s_barrier')]
        o += self.nonce_fin() + [I(f'v_mov_b32 {v(NON)}, s{sNONCE}')]
        o += [I(f'v_add_u32 {v(cw)}, {LDS_C}, {v(L16)}')]
        o += [I(f'ds_read_b128 {a(W2A+4*jj,4)}, {v(cw)} offset:{jj*1024}') for jj in range(28)]
        S1, S2 = T + 8, T + 10
        o += [I(f'v_mov_b32 {v(S1+u)}, 0') for u in range(4)]
        o += [CMT('---- x arrives: fragments, row statistics, forward DFT tile on the raw rows')]
        def wdma(t, stage):
            r = [I(f's_add_u32 m0, s{sLB}, {t*4096}'), I(f's_mov_b32 s{sSO}, {t*229376 + stage*128}')]
            return r + [I(f'buffer_load_dwordx4 {v(DV+g)}, {s(sWA,4)}, s{sSO} offen offset:{g*1024} lds', tag=f'W{stage}_{t}') for g in range(4)]
        def xproc(t):
            r = []
            for u in range(16):
                x = X + 16 * t + u
                r += [I(f'v_dot2_f32_bf16 {v(S1+u%2)}, {v(x)}, s{sONES}, {v(S1+u%2)}'), I(f'v_dot2_f32_bf16 {v(S2+u%2)}, {v(x)}, {v(x)}, {v(S2+u%2)}')]
            for u in range(4):
                jj = 4 * t + u
                r += [I(f'v_mfma_f32_32x32x16_bf16 {v(ACC0,16)}, {v(X+4*jj,4)}, {a(W2A+4*jj,4)}, {v(ACC0,16) if jj else 0}')]
            return r
        for t in range(7):
            o += [WAITVM(f'x{t}')]
            if t == 0: o += self.stamp()
            o += [I(f'ds_read_b128 {v(X+16*t+4*u,4)}, {v(XR+u)} offset:{t*4096}') for u in range(4)]
            if t: o += xproc(t - 1)
            o += [WAITREG(v(X + 16 * t, 16))] + wdma(t, 0)
        o += xproc(6)
        o += self.stamp()
        M_, R_, RB, CC = T + 12, T + 13, T + 14, T + 16
        o += [I(f'v_add_f32 {v(S1)}, {v(S1)}, {v(S1+1)}'), I(f'v_add_f32 {v(S2)}, {v(S2)}, {v(S2+1)}'),
              I(f'v_mov_b32 {v(S1+1)}, {v(S1)}'), I(f'v_mov_b32 {v(S2+1)}, {v(S2)}'),
              I(f'v_permlane32_swap_b32 {v(S1)}, {v(S1+1)}'), I(f'v_permlane32_swap_b32 {v(S2)}, {v(S2+1)}'),
              I(f'v_add_f32 {v(S1)}, {v(S1)}, {v(S1+1)}'), I(f'v_add_f32 {v(S2)}, {v(S2)}, {v(S2+1)}'),
              I(f'v_mul_f32 {v(M_)}, {fhex(1.0/448)}, {v(S1)}'), I(f'v_mul_f32 {v(S2)}, {fhex(1.0/448)}, {v(S2)}'),
              I(f'v_fma_f32 {v(S2)}, -{v(M_)}, {v(M_)}, {v(S2)}'), I(f'v_max_f32 {v(S2)}, 0, {v(S2)}'),
              I(f'v_cvt_pk_bf16_f32 {v(S2)}, {v(S2)}, {v(M_)}'), I(f'v_and_b32 {v(M_)}, 0xffff0000, {v(S2)}'),
              I(f'v_lshlrev_b32 {v(S2)}, 16, {v(S2)}'), I(f'v_add_f32 {v(S2)}, {fhex(1e-5)}, {v(S2)}'),
              I(f'v_cvt_pk_bf16_f32 {v(S2)}, {v(S2)}, {v(S2)}'), I(f'v_lshlrev_b32 {v(S2)}, 16, {v(S2)}'),
              I(f'v_sqrt_f32 {v(S2)}, {v(S2)}'),
              I(f'v_cvt_pk_bf16_f32 {v(S2)}, {v(S2)}, {v(S2)}'), I(f'v_lshlrev_b32 {v(S2)}, 16, {v(S2)}'),
              I(f'v_rcp_f32 {v(R_)}, {v(S2)}'),
              I(f's_lshl_b32 s{t0+4}, s{sW}, 7'), I(f's_add_u32 s{t0+4}, s{t0+4}, {LDS_R}'),
              I(f'v_lshl_add_u32 {v(q0)}, {v(A_)}, 2, s{t0+4}'),
              I(f'v_mul_f32 {v(q1)}, {fhex(1.0/256)}, {v(R_)}'),
              I(f'ds_write_b32 {v(q0)}, {v(q1)}', tag='rw'),
              I(f'v_lshl_add_u32 {v(q0)}, {v(H_)}, 4, s{t0+4}')]
        RR = T + 24
        o += [I(f'ds_read_b128 {v(RR+4*g,4)}, {v(q0)} offset:{32*g}') for g in range(4)]
        o += [I(f'v_mul_f32 {v(RB)}, {fhex(LOG2E)}, {v(R_)}'), I(f'v_cvt_pk_bf16_f32 {v(RB)}, {v(RB)}, 0'),
              I(f'v_lshlrev_b32 {v(RB+1)}, 16, {v(RB)}'),
              I(f'v_mul_f32 {v(CC)}, {v(M_)}, {v(RB+1)}'), I(f'v_sub_f32 {v(CC)}, 0, {v(CC)}'),
              I(f'v_mul_f32 {v(IK2)}, {v(RB+1)}, {v(S2)}'), I(f'v_mul_f32 {v(IK2)}, {v(IK2)}, {v(IK2)}')]
        o += [I(f'v_lshl_add_u32 {v(q1)}, {v(H_)}, 2, s{sW}'), I(f'v_and_b32 {v(q2)}, 7, {v(A_)}'), I(f'v_xor_b32 {v(q1)}, {v(q1)}, {v(q2)}'),
              I(f'v_lshlrev_b32 {v(q1)}, 4, {v(q1)}'), I(f'v_lshl_add_u32 {v(q1)}, {v(A_)}, 7, {v(q1)}'), I(f'v_add_u32 {v(q1)}, {LDS_BN}, {v(q1)}')]
        o += [I(f'v_mul_f32 {v(ACC0+r)}, {v(ACC0+r)}, {v(RR+r)}') for r in range(16)]
        o += [I(f'v_cvt_pk_f16_f32 {v(RR+u)}, {v(ACC0+2*u)}, {v(ACC0+2*u+1)}') for u in range(8)]
        o += [I(f'ds_write_b128 {v(q1)}, {v(RR+4*jj,4)} offset:{jj*4096}') for jj in range(2)]
        o += [I(f'v_lshrrev_b32 {v(q0)}, 3, {v(L)}'), I(f'v_xor_b32 {v(q1)}, {v(q0)}, {v(L)}'),
              I(f'v_lshlrev_b32 {v(q1)}, 4, {v(q1)}'), I(f's_lshl_b32 s{t0+4}, s{sW}, 10'), I(f's_add_u32 s{t0+4}, s{t0+4}, {LDS_BN}'),
              I(f'v_add_u32 {v(q1)}, s{t0+4}, {v(q1)}'),
              I(f'v_lshlrev_b32 {v(q0)}, 12, {v(q0)}'), I(f'v_bfe_u32 {v(q2)}, {v(L)}, 2, 1'), I(f'v_lshl_add_u32 {v(q0)}, {v(q2)}, 9, {v(q0)}'),
              I(f'v_and_b32 {v(q2)}, 3, {v(L)}'), I(f'v_lshl_add_u32 {v(q0)}, {v(q2)}, 4, {v(q0)}'),
              I(f's_lshl_b32 s{t0+4}, s{sJ}, 2'), I(f's_add_u32 s{t0+4}, s{t0+4}, s{sW}'),
              I(f's_lshl_b32 s{t0+5}, s{t0+4}, 15'), I(f's_lshr_b32 s{t0+6}, s{sI}, 3'), I(f's_lshl_b32 s{t0+6}, s{t0+6}, 11'),
              I(f's_add_u32 s{t0+5}, s{t0+5}, s{t0+6}'), I(f's_and_b32 s{t0+6}, s{sI}, 7'), I(f's_lshl_b32 s{t0+6}, s{t0+6}, 6'),
              I(f's_add_u32 s{t0+5}, s{t0+5}, s{t0+6}'), I(f's_add_u32 s{t0+5}, s{t0+5}, {WS_X1}'),
              I('s_waitcnt lgkmcnt(0)'), I('s_barrier')]
        o += [I(f'ds_read_b128 {v(RR+8+4*jj,4)}, {v(q1)} offset:{jj*4096}') for jj in range(2)]
        o += [I(f'buffer_store_dwordx4 {v(RR+8+4*jj,4)}, {v(q0)}, {s(sWS,4)}, s{t0+5} offen offset:{jj*1024} sc1', tag='x1st') for jj in range(2)]
        o += self.stamp()
        o += [CMT('---- normalise the rows: x*rb - m*rb, rb = bf16(log2e/sd)')]
        nt = T + 44
        nrm = []
        for u in range(0, 112, 2):
            k = nt + 4 * ((u // 2) % 2)
            row = []
            for z in range(2):
                row += [I(f'v_dot2_f32_bf16 {v(k+2*z)}, {v(X+u+z)}, {v(RB)}, {v(CC)}'), I(f'v_dot2_f32_bf16 {v(k+2*z+1)}, {v(X+u+z)}, {v(RB+1)}, {v(CC)}')]
            cv = [I(f'v_cvt_pk_bf16_f32 {v(X+u+z)}, {v(k+2*z)}, {v(k+2*z+1)}') for z in range(2)]
            nrm.append((row, cv))
        for n_, (row, cv) in enumerate(nrm):
            o += row
            if n_: o += nrm[n_ - 1][1]
        o += nrm[-1][1]
        o += [WAITVM('x1st')]
        o += self.flag(ZER, NON, [I(f's_lshl_b32 s{sSO}, s{t0+4}, 4'), I(f's_add_u32 s{sSO}, s{sSO}, s{sI}'),
                                  I(f's_lshl_b32 s{sSO}, s{sSO}, 7'), I(f's_add_u32 s{sSO}, s{sSO}, {WS_FX}')])
        o += self.stamp()
        o += [I(f's_mul_i32 s{t0+4}, s{t0+3}, 114688'), I(f's_lshl_b32 s{t0+5}, s{sJ}, 10'), I(f's_add_u32 s{t0+4}, s{t0+4}, s{t0+5}'),
              I(f's_add_u32 s{t0+4}, s{t0+4}, {WS_H}'), I(f'v_add_u32 {v(HST)}, s{t0+4}, {v(L16)}'),
              I(f's_lshr_b32 s{t0+4}, s{t0+3}, 1'), I(f's_lshl_b32 s{t0+4}, s{t0+4}, 12'), I(f's_and_b32 s{t0+5}, s{t0+3}, 1'),
              I(f's_mul_i32 s{t0+5}, s{t0+5}, 14'), I(f's_add_u32 s{t0+5}, s{t0+5}, s{sJ}'), I(f's_lshl_b32 s{t0+5}, s{t0+5}, 7'),
              I(f's_add_u32 s{t0+8}, s{t0+4}, s{t0+5}'),
              I(f'v_min_u32 {v(FL)}, 27, {v(L)}'), I(f'v_lshlrev_b32 {v(FL)}, 7, {v(FL)}')]
        sHF = t0 + 8
        def w2dma(t, stage, ldsbase_s, ldsoff):
            r = [I(f's_add_u32 m0, s{ldsbase_s}, {ldsoff}'), I(f's_mov_b32 s{sSO}, {t*229376 + stage*57344}')]
            return r + [I(f'buffer_load_dwordx4 {v(D2+g)}, {s(sWB,4)}, s{sSO} offen offset:{g*1024} lds', tag=f'w2{stage}_{t}') for g in range(4)]
        def w2tr(dst, off, tag=None):
            return [I(f'ds_read_b64_tr_b16 {a(dst+4*ct+2*z,2)}, {v(T2+ct)} offset:{off+1024*z}', tag=tag) for ct in range(2) for z in range(2)]
        def wtr(sg, m):
            mat, ct = m % 2, m // 2
            d = ABUF[sg % 3] + 4 * m
            return [I(f'ds_read_b64_tr_b16 {a(d+2*z,2)}, {v(TW+2*mat+ct)} offset:{(sg%28)*1024+512*z}') for z in range(2)]
        def epilogue(stage):
            r = []
            for ct in range(2):
                ob = T + 8 * ct
                for e in range(0, 16, 2):
                    if stage == 0:
                        g0, u0 = ACC0 + 32 * ct + e, ACC0 + 32 * ct + 16 + e
                    else:
                        g0 = T + 16 + 4 * ((e // 2) % 2); u0 = g0 + 2
                        r += [I(f'v_accvgpr_read_b32 {v(g0+z)}, {a(ACC1+32*ct+e+z)}') for z in range(2)]
                        r += [I(f'v_accvgpr_read_b32 {v(u0+z)}, {a(ACC1+32*ct+16+e+z)}') for z in range(2)]
                    r += [I(f'v_mul_f32 {v(u0+z)}, {v(g0+z)}, {v(u0+z)}') for z in range(2)]
                    r += [I(f'v_exp_f32 {v(g0+z)}, -{v(g0+z)}') for z in range(2)]
                    r += [I(f'v_fma_f32 {v(g0+z)}, {v(g0+z)}, {v(IK2)}, {v(IK2)}') for z in range(2)]
                    r += [I(f'v_rcp_f32 {v(g0+z)}, {v(g0+z)}') for z in range(2)]
                    r += [I(f'v_mul_f32 {v(u0+z)}, {v(u0+z)}, {v(g0+z)}') for z in range(2)]
                    r += [I(f'v_cvt_pk_bf16_f32 {v(ob+e//2)}, {v(u0)}, {v(u0+1)}')]
                    if e in (6, 14):
                        ks = 2 * ct + e // 8
                        r += [I(f's_mov_b32 s{t0+9}, {stage*57344 + ks*14336}'),
                              I(f'buffer_store_dwordx4 {v(ob+4*(e//8),4)}, {v(HST)}, {s(sWS,4)}, s{t0+9} offen sc1', tag=f'h{stage}st')]
            return r
        def hflag(stage):
            return [WAITVM(f'h{stage}st')] + self.flag(ZER, NON, [I(f's_add_u32 s{sSO}, s{sHF}, {WS_FH + stage*131072}')])
        o += [CMT('---- gate/up GEMM: two passes of 64+64 columns, weights streamed through LDS')]
        o += [WAITVM('W0_0'), I('s_barrier')]
        for sg in range(2):
            for m in range(4): o += wtr(sg, m)
        mf, fixed = [], {}
        for sg in range(56):
            stage, k = divmod(sg, 28)
            for m in range(4):
                accr = (v(ACC0 + 16 * m, 16) if stage == 0 else a(ACC1 + 16 * m, 16))
                mf.append(I(f'v_mfma_f32_32x32x16_bf16 {accr}, {a(ABUF[sg%3]+4*m,4)}, {v(X+4*k,4)}, {accr if k else 0}'))
                f = []
                g = (sg + 2) // 4
                if m == 0 and (sg + 2) % 4 == 0 and g < 14:
                    f += [WAITVM(f'W{g//7}_{g%7}'), I('s_barrier')]
                if sg + 2 < 56: f += wtr(sg + 2, m)
                if m == 3 and sg + 1 < 56: f += [WAITREG(a(ABUF[(sg+1)%3], 16))]
                fixed[4 * sg + m] = f
        def put(pos, lst, per=2):
            for n_ in range(0, len(lst), per): fixed[pos + n_ // per] = fixed[pos + n_ // per] + lst[n_:n_ + per]
        Bpos = lambda g: 4 * (4 * g - 2)
        for t in range(7): put(Bpos(t + 2) + 1, wdma(t, 1))
        for t in range(7):
            put(16 * t + 0 if t else 1, w2dma(t, 0, sRB, (t % 3) * 4096))
            rd = [WAITVM(f'w20_{t}')] + w2tr(W2A + 16 * t, (t % 3) * 4096) + w2tr(W2A + 16 * t + 8, (t % 3) * 4096 + 2048)
            put(16 * (t + 2) + 3, rd)
        for t in range(5): put(Bpos(t + 9) + 1, w2dma(t, 1, sLB, t * 4096))
        st0, _ = weave(mf[:112], {i_: fixed[i_] for i_ in range(112)}, [])
        st1, rest = weave(mf[112:], {i_: fixed[i_ + 112] for i_ in range(112)}, epilogue(0), start=3)
        assert not rest, len(rest)
        o += st0 + self.stamp() + st1
        o += hflag(0)
        o += self.stamp()
        o += [I('s_barrier')]
        o += w2dma(5, 1, sLB, 5 * 4096) + w2dma(6, 1, sLB, 6 * 4096)
        o += [CMT('---- second half of h, then the output GEMM: K split over the four waves')]
        o += epilogue(1)
        o += self.stamp()
        HL = DV
        o += [I(f's_mul_i32 s{t0+4}, s{sP}, 229376'), I(f's_mul_i32 s{t0+5}, s{sW}, 14336'), I(f's_add_u32 s{t0+4}, s{t0+4}, s{t0+5}'),
              I(f's_add_u32 s{t0+4}, s{t0+4}, {WS_H}'), I(f'v_add_u32 {v(HL)}, s{t0+4}, {v(L16)}'), I(f'v_add_u32 {v(HL+1)}, 114688, {v(HL)}'),
              I(f's_lshl_b32 s{t0+6}, s{sP}, 12'), I(f's_add_u32 s{t0+6}, s{t0+6}, {WS_FH}')]
        o += self.poll(FL, FLD, f's{t0+6}')
        so4 = ['0', f's{sK4}', f's{sK8}', f's{sK12}']
        for jj in range(14):
            o += [I(f'buffer_load_dwordx4 {v(X+8*jj+4*bi,4)}, {v(HL+bi)}, {s(sWS,4)}, {so4[jj//4]} offen offset:{(jj%4)*1024} sc1') for bi in range(2)]
        o += hflag(1)
        o += self.stamp()
        dd, p0 = DV + 2, TW
        ig = [I(f's_lshl_b32 s{t0+4}, s{sN}, 6'), I(f'v_add_u32 {v(dd)}, s{t0+4}, {v(A_)}'), I(f'v_cvt_f32_u32 {v(dd)}, {v(dd)}'),
              I(f'v_add_f32 {v(dd+1)}, {fhex(32.0)}, {v(dd)}'),
              I(f's_mul_i32 s{t0+4}, s{sW}, 56'), I(f's_add_u32 s{t0+4}, s{t0+4}, 1'), I(f'v_lshl_add_u32 {v(p0+2)}, {v(H_)}, 2, s{t0+4}'),
              I(f'v_cvt_f32_u32 {v(p0+2)}, {v(p0+2)}')]
        for ct in range(2):
            ig += [I(f'v_mul_f32 {v(dd+ct)}, {fhex(1.0/448)}, {v(dd+ct)}'), I(f'v_mul_f32 {v(p0+ct)}, {v(dd+ct)}, {v(p0+2)}'),
                   I(f'v_fract_f32 {v(p0+ct)}, {v(p0+ct)}')]
        o += ig
        IDF = X
        def idgen(mm, ct):
            r = []; ta, tb = D2, D2 + 2
            for u in range(0, 4, 2):
                r += [I(f'v_fmamk_f32 {v(ta+z)}, {v(dd+ct)}, {fhex(8.0*mm+u+z)}, {v(p0+ct)}') for z in range(2)]
                r += [I(f'v_sin_f32 {v(tb+z)}, {v(ta+z)}') for z in range(2)]
                r += [I(f'v_cos_f32 {v(ta+z)}, {v(ta+z)}') for z in range(2)]
                r += [I(f'v_cvt_pk_bf16_f32 {v(IDF+8*mm+4*ct+u+z)}, {v(ta+z)}, -{v(tb+z)}') for z in range(2)]
            return r
        def g2(areg, breg, first=False):
            return [I(f'v_mfma_f32_32x32x16_bf16 {v(ACC0+32*bi+16*ct,16)}, {areg(ct)}, {breg(bi)}, {0 if first else v(ACC0+32*bi+16*ct,16)}')
                    for bi in range(2) for ct in range(2)]
        mf = []
        for jj in range(14): mf += g2(lambda ct: a(W2A + 8 * jj + 4 * ct, 4), lambda bi: v(X + 8 * jj + 4 * bi, 4), jj == 0)
        fill = sum((idgen(mm, ct) for mm in range(7) for ct in range(2)), [])
        st, rest = weave(mf, {}, fill, start=4)
        o += st + rest
        o += self.stamp()
        YL = D2
        o += [I(f's_mul_i32 s{t0+4}, s{sP}, 57344'), I(f's_mul_i32 s{t0+5}, s{sW}, 14336'), I(f's_add_u32 s{t0+4}, s{t0+4}, s{t0+5}'),
              I(f's_add_u32 s{t0+4}, s{t0+4}, {WS_Y}'),
              I(f'v_lshlrev_b32 {v(YL)}, 4, {v(A_)}'), I(f'v_lshl_add_u32 {v(YL)}, {v(H_)}, 10, {v(YL)}'), I(f'v_add_u32 {v(YL)}, s{t0+4}, {v(YL)}'),
              I(f's_add_u32 s{t0+6}, s{t0+6}, 131072'),
              I(f'v_add_u32 {v(HL)}, 57344, {v(HL)}'), I(f'v_add_u32 {v(HL+1)}, 57344, {v(HL+1)}')]
        o += self.poll(FL, FLD, f's{t0+6}')
        for jj in range(14):
            o += [I(f'buffer_load_dwordx4 {a(8*jj+4*bi,4)}, {v(HL+bi)}, {s(sWS,4)}, {so4[jj//4]} offen offset:{(jj%4)*1024} sc1') for bi in range(2)]
        o += self.stamp()
        RX, OA = X + 96, D2 + 1
        o += [I(f's_and_b32 s{t0+4}, s{sW}, 1'), I(f's_mul_i32 s{t0+4}, s{t0+4}, {16*64*896}'),
              I(f's_lshr_b32 s{t0+5}, s{sW}, 1'), I(f's_lshl_b32 s{t0+7}, s{sP}, 1'), I(f's_add_u32 s{t0+5}, s{t0+5}, s{t0+7}'),
              I(f's_mul_i32 s{t0+5}, s{t0+5}, 896'), I(f's_add_u32 s{t0+4}, s{t0+4}, s{t0+5}'),
              I(f's_lshl_b32 s{t0+5}, s{sN}, 7'), I(f's_add_u32 s{t0+4}, s{t0+4}, s{t0+5}'),
              I(f'v_lshrrev_b32 {v(OA)}, 3, {v(L)}'), I(f'v_mul_u32_u24 {v(OA)}, {64*896}, {v(OA)}'),
              I(f'v_and_b32 {v(OA+1)}, 7, {v(L)}'), I(f'v_lshlrev_b32 {v(OA+1)}, 4, {v(OA+1)}'),
              I(f'v_add3_u32 {v(OA)}, {v(OA)}, {v(OA+1)}, s{t0+4}'), I(f'v_add_u32 {v(OA+1)}, {8*64*896}, {v(OA)}')]
        o += [I(f'buffer_load_dwordx4 {v(RX+4*it,4)}, {v(OA+it)}, {s(sX,4)}, 0 offen') for it in range(2)]
        o += [I(f's_sub_u32 s{t0+4}, s{sRB}, s{sLB}'), I(f'v_subrev_u32 {v(T2)}, s{t0+4}, {v(T2)}'), I(f'v_subrev_u32 {v(T2+1)}, s{t0+4}, {v(T2+1)}'),
              WAITVM('w21_6')]
        B2 = [AB, AB + 8, AB + 16]
        o += w2tr(B2[0], 0) + w2tr(B2[1], 2048)
        mf, fixed = [], {}
        for jj in range(14):
            mf += g2(lambda ct: a(B2[jj % 3] + 4 * ct, 4), lambda bi: a(8 * jj + 4 * bi, 4))
            if jj + 2 < 14: fixed[4 * jj] = w2tr(B2[(jj + 2) % 3], (jj + 2) * 2048)
        st, _ = weave(mf, fixed, [])
        o += st
        o += self.stamp()
        o += [I(f's_mul_i32 s{t0+6}, s{sW}, {28*128}'), I(f's_add_u32 s{t0+6}, s{t0+6}, {WS_FY}')]
        o += self.poll(FL, FLD, f's{t0+6}')
        for mm in range(7):
            o += [I(f'buffer_load_dwordx4 {v(T+8*mm+4*z,4)}, {v(YL)}, {s(sWS,4)}, {so4[mm//2]} offen offset:{(mm%2)*2048+512*z} sc1') for z in range(2)]
        o += self.stamp()
        for mm in range(7):
            o += [I(f'v_swap_b32 {v(T+8*mm+2+z)}, {v(T+8*mm+4+z)}') for z in range(2)]
            o += g2(lambda ct: v(IDF + 8 * mm + 4 * ct, 4), lambda bi: v(T + 8 * mm + 4 * bi, 4))
        o += [CMT('---- reduce the four K slices through LDS, add the residual, store')]
        WA = T
        o += [I(f'v_and_b32 {v(WA+4)}, 7, {v(A_)}'), I(f'v_xor_b32 {v(WA+4)}, {v(WA+4)}, {v(H_)}'), I(f'v_lshlrev_b32 {v(WA+4)}, 4, {v(WA+4)}'),
              I(f'v_lshl_add_u32 {v(WA+4)}, {v(A_)}, 8, {v(WA+4)}'), I(f'v_add_u32 {v(WA)}, s{sLB}, {v(WA+4)}')]
        o += [I(f'v_xor_b32 {v(WA+g)}, {32*g}, {v(WA)}') for g in (1, 2, 3)]
        RA = T + 6
        o += [I(f'v_lshrrev_b32 {v(RA+2)}, 3, {v(L)}'), I(f'v_and_b32 {v(RA)}, 7, {v(L)}'), I(f'v_lshlrev_b32 {v(RA)}, 1, {v(RA)}'),
              I(f'v_xor_b32 {v(RA)}, {v(RA)}, {v(RA+2)}'), I(f'v_lshlrev_b32 {v(RA)}, 4, {v(RA)}'),
              I(f'v_lshl_add_u32 {v(RA)}, {v(RA+2)}, 8, {v(RA)}'), I(f's_lshl_b32 s{t0+4}, s{sW}, 12'), I(f'v_add_u32 {v(RA)}, s{t0+4}, {v(RA)}'),
              I(f'v_xor_b32 {v(RA+1)}, 16, {v(RA)}'),
              I(f'v_add_u32 {v(RA+2)}, 57344, {v(RA)}'), I(f'v_add_u32 {v(RA+3)}, 57344, {v(RA+1)}')]
        for bi in range(2):
            for ct in range(2):
                for g in range(4):
                    o += [I(f'ds_write_b128 {v(WA+g)}, {v(ACC0+32*bi+16*ct+4*g,4)} offset:{bi*8192+ct*128}')]
        o += [I('s_waitcnt lgkmcnt(0)'), I('s_barrier')]
        for it in range(2):
            for src in range(4):
                for x_ in range(2):
                    o += [I(f'ds_read_b128 {v(X+32*it+8*src+4*x_,4)}, {v(RA+2*(src//2)+x_)} offset:{(src%2)*28672+it*2048}')]
        for it in range(2):
            b0 = X + 32 * it
            for u in range(4):
                o += [I(f'v_lshlrev_b32 {v(T+16+2*u)}, 16, {v(RX+4*it+u)}'), I(f'v_and_b32 {v(T+17+2*u)}, 0xffff0000, {v(RX+4*it+u)}')]
            for src in range(4):
                o += [I(f'v_pk_add_f32 {v(T+16+2*u,2)}, {v(T+16+2*u,2)}, {v(b0+8*src+2*u,2)}') for u in range(4)]
            o += [I(f'v_cvt_pk_bf16_f32 {v(T+24+4*it+u)}, {v(T+16+2*u)}, {v(T+17+2*u)}') for u in range(4)]
            o += [I(f'buffer_store_dwordx4 {v(T+24+4*it,4)}, {v(OA+it)}, {s(sOUT,4)}, 0 offen')]
        o += [I(f's_or_b32 s{t0+4}, s2, s{sW}'), I(f's_cmp_lg_u32 s{t0+4}, 0'), I('s_cbranch_scc1 L_gdone')]
        o += self.flag(ZER, NON, [I(f's_mov_b32 s{sSO}, {WS_E}')])
        o += [LABEL('L_gdone')]
        o += self.stamp() + self.dump_stamps(T + 40)
        o += [I('s_endpgm')]
        return o

    def fft(self):
        self.nst = 1 if self.stamps else 0
        o = [LABEL('L_fft'), DRAINED(), CMT('---- FFT workgroup: two spectral columns per wave')]
        L, L16, LAM, H_ = 0, 1, 2, 3
        TA, NON, ZER, FL, FLD, YS, MUA, MUB = 4, 5, 6, 7, 8, 9, 10, 11
        q0 = 12
        WIN, OPA, OPB, ACA, ACB = 32, 64, 96, 128, 192
        UIN, FC = 0, 64
        t0 = sT; sM = sI
        o += [I(f's_sub_u32 s{t0+2}, s{t0}, 28'), I(f's_lshl_b32 s{sM}, s{t0+1}, 2'), I(f's_add_u32 s{sM}, s{sM}, s{t0+2}'),
              I(f's_cmp_ge_u32 s{sM}, 28'), I('s_cbranch_scc1 L_end'),
              I(f'v_and_b32 {v(LAM)}, 31, {v(L)}'), I(f'v_lshrrev_b32 {v(H_)}, 5, {v(L)}'), I(f'v_mov_b32 {v(ZER)}, 0'),
              I(f's_mov_b32 s{sTWO}, 0x40004000'),
              I(f's_mov_b32 s{sK4}, 4096'), I(f's_mov_b32 s{sK8}, 8192'), I(f's_mov_b32 s{sK12}, 12288')]
        o += [I(f's_mul_i32 s{t0+2}, s{sW}, {512*450}'), I(f's_lshl_b32 s{t0+3}, s{sM}, 4'), I(f's_add_u32 s{t0+2}, s{t0+2}, s{t0+3}'),
              I(f's_add_u32 s{t0+2}, s{t0+2}, 2'),
              I(f'v_mul_u32_u24 {v(q0)}, 450, {v(L)}'), I(f'v_add_u32 {v(q0)}, s{t0+2}, {v(q0)}'),
              I(f's_lshl_b32 s{sLB}, s{sW}, 13'),
              I('s_waitcnt lgkmcnt(0)')]
        o += self.srd(sWA, 6, WB) + self.srd(sWB, 8, WB) + self.srd(sWS, 22, WS_SIZE) + self.nonce_load()
        for u in range(8):
            for arr in range(2):
                o += [I(f's_add_u32 m0, s{sLB}, {arr*32768 + u*1024}'), I(f's_mov_b32 s{sSO}, {u*64*450}'),
                      I(f'buffer_load_dwordx4 {v(q0)}, {s((sWA,sWB)[arr],4)}, s{sSO} offen lds', tag='wf')]
        o += self.stamp()
        al, be, lf, h4 = q0 + 1, q0 + 2, q0 + 3, q0 + 4
        ph, cs, sn = q0 + 6, q0 + 8, q0 + 10
        o += [I(f'v_cvt_f32_u32 {v(lf)}, {v(LAM)}'), I(f'v_lshlrev_b32 {v(h4)}, 2, {v(H_)}'), I(f'v_cvt_f32_u32 {v(h4)}, {v(h4)}'),
              I(f's_mul_i32 s{t0+2}, s{sW}, 24576'), I(f's_add_u32 s{t0+2}, s{t0+2}, 65536'), I(f'v_add_u32 {v(TA)}, s{t0+2}, {v(L16)}')]
        def table(setup, outc, outs, post=None):
            r = list(setup)
            for rho in range(8):
                r += [I(f'v_fmamk_f32 {v(ph+z)}, {v(al)}, {fhex(float(idx0(2*rho+z)))}, {v(be)}') for z in range(2)]
                r += [I(f'v_cos_f32 {v(cs+z)}, {v(ph+z)}') for z in range(2)] + [I(f'v_sin_f32 {v(sn+z)}, {v(ph+z)}') for z in range(2)]
                r += [I(f'v_cvt_pk_f16_f32 {v(outc(rho))}, {v(cs)}, {v(cs+1)}'), I(f'v_cvt_pk_f16_f32 {v(outs(rho))}, {v(sn)}, {v(sn+1)}')]
                if post: r += post(rho)
            return r
        def consts(base, setup):
            c_, s_ = q0 + 12, q0 + 13
            def post(rho):
                return [I(f'v_accvgpr_write_b32 {a(base+rho)}, {v(c_)}'), I(f'v_accvgpr_write_b32 {a(base+8+rho)}, {v(s_)}'),
                        I(f'v_xor_b32 {v(s_)}, 0x80008000, {v(s_)}'), I(f'v_accvgpr_write_b32 {a(base+16+rho)}, {v(s_)}')]
            return table(setup, lambda rho: c_, lambda rho: s_, post)
        F32, G1F, G1I = FC, FC + 24, FC + 48
        o += consts(F32, [I(f'v_mul_f32 {v(al)}, {fhex(1/32)}, {v(lf)}'), I(f'v_mul_f32 {v(be)}, {v(al)}, {v(h4)}')])
        o += consts(G1I, [I(f'v_fmamk_f32 {v(be)}, {v(lf)}, {fhex(1/64)}, {v(be)}')])
        o += consts(G1F, [I(f'v_add_f32 {v(al)}, {fhex(1/64)}, {v(al)}'), I(f'v_mul_f32 {v(be)}, {v(al)}, {v(h4)}')])
        o += table([I(f'v_mul_f32 {v(al)}, {fhex(1/2048)}, {v(lf)}'), I(f'v_mul_f32 {v(be)}, {v(al)}, {v(h4)}')],
                   lambda rho: WIN + 4 * rho, lambda rho: WIN + 4 * rho + 1)
        o += table([I(f'v_add_f32 {v(al)}, {fhex(1/64)}, {v(al)}'), I(f'v_mul_f32 {v(be)}, {v(al)}, {v(h4)}')],
                   lambda rho: WIN + 4 * rho + 2, lambda rho: WIN + 4 * rho + 3,
                   lambda rho: [I(f'ds_write_b128 {v(TA)}, {v(WIN+4*rho,4)} offset:{16384+rho*1024}')])
        o += table([I(f'v_mul_f32 {v(al)}, {fhex(1/2048)}, {v(lf)}'), I(f'v_add_f32 {v(be)}, {fhex(32.0)}, {v(h4)}'), I(f'v_mul_f32 {v(be)}, {v(al)}, {v(be)}')],
                   lambda rho: WIN + 4 * rho + 2, lambda rho: WIN + 4 * rho + 3)
        o += [I('s_waitcnt lgkmcnt(0)')] + self.nonce_fin() + [I(f'v_mov_b32 {v(NON)}, s{sNONCE}')]
        o += self.stamp()
        ga = q0
        o += [I(f'v_lshlrev_b32 {v(ga)}, 4, {v(LAM)}'), I(f'v_lshl_add_u32 {v(ga)}, {v(H_)}, 12, {v(ga)}'),
              I(f's_lshl_b32 s{t0+2}, s{sW}, 2'), I(f'v_add_u32 {v(ga)}, s{t0+2}, {v(ga)}'),
              WAITVM('wf'), I('s_barrier')]
        o += self.stamp()
        wr = lambda e0, arr, r: ACA + 32 * e0 + 16 * arr + r
        for e0 in range(2):
            for arr in range(2):
                o += [I(f'ds_read_b32 {v(wr(e0,arr,r))}, {v(ga)} offset:{arr*32768 + e0*512 + idx0(r)*1024}') for r in range(16)]
        mx = q0 + 1
        o += [I(f'v_mov_b32 {v(mx)}, 0'), I(f'v_mov_b32 {v(mx+1)}, 0')]
        for u in range(64):
            o += [I(f'v_and_b32 {v(q0+4+u%2)}, 0x7fff7fff, {v(ACA+u)}'), I(f'v_pk_max_u16 {v(mx+u%2)}, {v(mx+u%2)}, {v(q0+4+u%2)}')]
        o += [I(f'v_pk_max_u16 {v(mx)}, {v(mx)}, {v(mx+1)}')]
        for mod in ('quad_perm:[1,0,3,2]', 'quad_perm:[2,3,0,1]', 'row_half_mirror', 'row_mirror'):
            o += [I(f'v_mov_b32_dpp {v(mx+1)}, {v(mx)} {mod} row_mask:0xf bank_mask:0xf'), I(f'v_pk_max_u16 {v(mx)}, {v(mx)}, {v(mx+1)}')]
        o += [I(f'v_mov_b32 {v(mx+1)}, {v(mx)}'), I(f'v_permlane16_swap_b32 {v(mx)}, {v(mx+1)}'), I(f'v_pk_max_u16 {v(mx)}, {v(mx)}, {v(mx+1)}'),
              I(f'v_mov_b32 {v(mx+1)}, {v(mx)}'), I(f'v_permlane32_swap_b32 {v(mx)}, {v(mx+1)}'), I(f'v_pk_max_u16 {v(mx)}, {v(mx)}, {v(mx+1)}')]
        sa, sb = q0 + 4, q0 + 5
        o += [I(f'v_bfe_u32 {v(MUA)}, {v(mx)}, 7, 8'), I(f'v_bfe_u32 {v(MUB)}, {v(mx)}, 23, 8'),
              I(f'v_max_u32 {v(MUA)}, 1, {v(MUA)}'), I(f'v_min_u32 {v(MUA)}, 252, {v(MUA)}'),
              I(f'v_max_u32 {v(MUB)}, 1, {v(MUB)}'), I(f'v_min_u32 {v(MUB)}, 252, {v(MUB)}'),
              I(f'v_sub_u32 {v(sa)}, 253, {v(MUA)}'), I(f'v_lshlrev_b32 {v(sa)}, 7, {v(sa)}'),
              I(f'v_sub_u32 {v(sb)}, 253, {v(MUB)}'), I(f'v_lshlrev_b32 {v(sb)}, 23, {v(sb)}'),
              I(f'v_add_u32 {v(MUA)}, 1, {v(MUA)}'), I(f'v_lshlrev_b32 {v(MUA)}, 23, {v(MUA)}'),
              I(f'v_add_u32 {v(MUB)}, 1, {v(MUB)}'), I(f'v_lshlrev_b32 {v(MUB)}, 23, {v(MUB)}'),
              I(f's_lshl_b32 s{t0+2}, s{sM}, 2'), I(f's_add_u32 s{t0+8}, s{t0+2}, s{sW}'),
              I(f's_cmp_eq_u32 s{t0+8}, 111'), I(f's_mov_b32 s{t0+3}, {fhex(1/1792)}'),
              I(f's_cselect_b32 s{t0+2}, {fhex(0.5/1792)}, s{t0+3}'),
              I(f'v_mul_f32 {v(MUA)}, s{t0+3}, {v(MUA)}'), I(f'v_mul_f32 {v(MUB)}, s{t0+2}, {v(MUB)}')]
        for col, sc in enumerate((sa, sb)):
            for rho in range(8):
                tb = ACB + 16 * (rho % 2); ob = tb + 8
                for e0 in range(2):
                    for arr in range(2):
                        o += [I(f'v_dot2_f32_bf16 {v(tb+4*e0+2*arr+z)}, {v(wr(e0,arr,2*rho+z))}, {v(sc)}, 0') for z in range(2)]
                o += [I(f'v_cvt_pk_f16_f32 {v(ob+u)}, {v(tb+2*u)}, {v(tb+2*u+1)}') for u in range(4)]
                o += [I(f'ds_write_b128 {v(TA)}, {v(ob,4)} offset:{col*8192+rho*1024}')]
        o += [I(f'v_min_u32 {v(FL)}, 15, {v(L)}'), I(f'v_lshlrev_b32 {v(FL)}, 7, {v(FL)}'),
              I(f's_lshr_b32 s{t0+2}, s{t0+8}, 1'), I(f's_lshl_b32 s{t0+2}, s{t0+2}, 11'), I(f's_add_u32 s{t0+2}, s{t0+2}, {WS_FX}'),
              I(f's_lshl_b32 s{t0+3}, s{t0+8}, 14'), I(f's_add_u32 s{t0+3}, s{t0+3}, {WS_X1}'), I(f'v_add_u32 {v(q0)}, s{t0+3}, {v(L16)}'),
              I(f's_lshl_b32 s{t0+3}, s{t0+8}, 9'), I(f's_add_u32 s{t0+3}, s{t0+3}, {WS_Y}'),
              I(f'v_mul_u32_u24 {v(YS)}, {2*57344}, {v(H_)}'), I(f'v_lshl_add_u32 {v(YS)}, {v(LAM)}, 4, {v(YS)}'), I(f'v_add_u32 {v(YS)}, s{t0+3}, {v(YS)}')]
        o += self.stamp()
        o += self.poll(FL, FLD, f's{t0+2}')
        o += self.stamp()
        so4 = ['0', f's{sK4}', f's{sK8}', f's{sK12}']
        for col in range(2):
            for b1 in range(2):
                for pl in range(2):
                    for jj in range(2):
                        o += [I(f'buffer_load_dwordx4 {a(UIN+32*col+16*pl+8*b1+4*jj,4)}, {v(q0)}, {s(sWS,4)}, {so4[2*col+pl]} offen offset:{b1*2048+jj*1024} sc1')]
        AC = (ACA, ACB); OP = (OPA, OPB)
        def mm(D, terms, data_is_a, c0=None):
            r = []; first = True
            for dat, con in terms:
                for jj in range(2):
                    x_, y_ = dat(jj), a(con + 4 * jj, 4)
                    if not data_is_a: x_, y_ = y_, x_
                    c_ = (v(c0, 16) if c0 is not None else 0) if first else v(D, 16)
                    r.append(I(f'v_mfma_f32_32x32x16_f16 {v(D,16)}, {x_}, {y_}, {c_}')); first = False
            return r
        def cplx(Dr, Di, re, im, K, fwd, data_is_a, cr=None, ci=None):
            c_, s_, n_ = K, K + 8, K + 16
            if fwd: return mm(Dr, [(re, c_), (im, s_)], data_is_a, cr) + mm(Di, [(im, c_), (re, n_)], data_is_a, ci)
            return mm(Dr, [(re, c_), (im, n_)], data_is_a, cr) + mm(Di, [(im, c_), (re, s_)], data_is_a, ci)
        opf = lambda c, t: (lambda jj: v(OP[c] + 8 * t + 4 * jj, 4))
        def M1(c):
            r = []
            for b1 in range(2):
                r += cplx(AC[c] + 32 * b1, AC[c] + 32 * b1 + 16, lambda jj: a(UIN + 32 * c + 8 * b1 + 4 * jj, 4),
                          lambda jj: a(UIN + 32 * c + 16 + 8 * b1 + 4 * jj, 4), F32, True, True)
            return r
        def M3(c): return cplx(AC[c], AC[c] + 16, opf(c, 0), opf(c, 1), F32, True, False) + cplx(AC[c] + 32, AC[c] + 48, opf(c, 2), opf(c, 3), G1F, True, False)
        def M4(c): return cplx(AC[c], AC[c] + 16, opf(c, 0), opf(c, 1), F32, False, True) + cplx(AC[c] + 32, AC[c] + 48, opf(c, 2), opf(c, 3), G1I, False, True, AC[c], AC[c] + 16)
        def M6(c): return cplx(AC[c], AC[c] + 16, opf(c, 0), opf(c, 1), F32, False, True) + cplx(AC[c] + 32, AC[c] + 48, opf(c, 2), opf(c, 3), F32, False, True)
        N0 = 'neg_lo:[1,0,0] neg_hi:[1,0,0]'; N2 = 'neg_lo:[0,0,1] neg_hi:[0,0,1]'
        def P(kind, c, reload=None):
            r = []
            for rho in range(8):
                A, B, C, D = (q0 + 8 * (rho % 2) + u for u in range(4)); E, F_ = D + 1, D + 2
                c0, s0, c1, s1 = (WIN + 4 * rho + u for u in range(4))
                o0, o1, o2, o3 = (OP[c] + 8 * t + rho for t in range(4))
                r += [I(f'v_cvt_pk_f16_f32 {v(A+t)}, {v(AC[c]+16*t+2*rho)}, {v(AC[c]+16*t+2*rho+1)}') for t in range(4)]
                if kind == 1:
                    r += [I(f'v_pk_mul_f16 {v(E)}, {v(A)}, {v(c0)}'), I(f'v_pk_mul_f16 {v(F_)}, {v(B)}, {v(c0)}'),
                          I(f'v_pk_fma_f16 {v(E)}, {v(B)}, {v(s0)}, {v(E)}'), I(f'v_pk_fma_f16 {v(F_)}, {v(A)}, {v(s0)}, {v(F_)} {N0}'),
                          I(f'v_pk_fma_f16 {v(o0)}, {v(C)}, {v(c1)}, {v(E)}'), I(f'v_pk_fma_f16 {v(o1)}, {v(D)}, {v(c1)}, {v(F_)}'),
                          I(f'v_pk_fma_f16 {v(o0)}, {v(D)}, {v(s1)}, {v(o0)}'), I(f'v_pk_fma_f16 {v(o1)}, {v(C)}, {v(s1)}, {v(o1)} {N0}'),
                          I(f'v_pk_fma_f16 {v(o2)}, {v(E)}, s{sTWO}, {v(o0)} {N2}'), I(f'v_pk_fma_f16 {v(o3)}, {v(F_)}, s{sTWO}, {v(o1)} {N2}')]
                else:
                    if kind == 3:
                        r += [I(f'v_pk_fma_f16 {v(A)}, {v(A)}, s{sTWO}, {v(C)} {N2}'), I(f'v_pk_fma_f16 {v(B)}, {v(B)}, s{sTWO}, {v(D)} {N2}')]
                        A, B, C, D = C, D, A, B
                    r += [I(f'v_pk_mul_f16 {v(o0)}, {v(A)}, {v(c0)}'), I(f'v_pk_mul_f16 {v(o1)}, {v(B)}, {v(c0)}'),
                          I(f'v_pk_mul_f16 {v(o2)}, {v(C)}, {v(c1)}'), I(f'v_pk_mul_f16 {v(o3)}, {v(D)}, {v(c1)}'),
                          I(f'v_pk_fma_f16 {v(o0)}, {v(B)}, {v(s0)}, {v(o0)} {N0}'), I(f'v_pk_fma_f16 {v(o1)}, {v(A)}, {v(s0)}, {v(o1)}'),
                          I(f'v_pk_fma_f16 {v(o2)}, {v(D)}, {v(s1)}, {v(o2)} {N0}'), I(f'v_pk_fma_f16 {v(o3)}, {v(C)}, {v(s1)}, {v(o3)}')]
                if reload is not None: r += [I(f'ds_read_b128 {v(WIN+4*rho,4)}, {v(TA)} offset:{reload+rho*1024}')]
            return r
        outq = lambda b1, u: (WIN if b1 == 0 else OPA) + 4 * u
        def Fin(c, store):
            r = []; mu = (MUA, MUB)[c]
            for b1 in range(2):
                for u in range(8):
                    re, im = AC[c] + 32 * b1 + 2 * u, AC[c] + 32 * b1 + 16 + 2 * u
                    r += [I(f'v_mul_f32 {v(x_)}, {v(x_)}, {v(mu)}') for x_ in (re, im, re + 1, im + 1)]
                    r += [I(f'v_cvt_pk_bf16_f32 {v(outq(b1,u)+2*z+c)}, {v(re+z)}, {v(im+z)}') for z in range(2)]
                    if store:
                        pp = 16 * b1 + 4 * (u // 2) + u % 2
                        r += [I(f's_mov_b32 s{sSO}, {pp*57344}'),
                              I(f'buffer_store_dwordx4 {v(outq(b1,u),4)}, {v(YS)}, {s(sWS,4)}, s{sSO} offen sc1', tag='yst')]
            return r
        def phase(ms, vs):
            per = -(-sum(cost(x) for x in vs) // 14)
            st, rest = weave(ms, {}, vs, budget=max(6, per), start=2)
            return st + rest
        o += M1(0)
        o += phase(M1(1), P(1, 0)) + phase(M3(0), P(1, 1, 0)) + phase(M3(1), P(2, 0, 8192)) + phase(M4(0), P(2, 1, 16384))
        o += phase(M4(1), P(3, 0)) + phase(M6(0), P(3, 1)) + phase(M6(1), Fin(0, False)) + Fin(1, True)
        o += self.stamp()
        o += [WAITVM('yst')]
        o += self.flag(ZER, NON, [I(f's_lshl_b32 s{sSO}, s{t0+8}, 7'), I(f's_add_u32 s{sSO}, s{sSO}, {WS_FY}')])
        o += self.stamp() + self.dump_stamps(q0)
        o += [LABEL('L_end'), I('s_endpgm')]
        return o

NSTAMPS = dict(gemm=15, fft=8)
HEADER = open(__file__.replace('gen.py', 'header.txt')).read()
def build(stamps=False):
    g = G(stamps)
    f = Finalizer()
    f.run(g.prologue() + g.gemm())
    n1 = f.nins; nop1 = f.nnop; ns1 = g.nst
    f.hist = []
    f.run(g.fft())
    sys.stderr.write(f'gemm ins {n1} (nops {nop1}), fft ins {f.nins-n1} (nops {f.nnop-nop1}) stamps {ns1} {g.nst}\n')
    body = '\n'.join(f.out)
    return (HEADER + f'''; @launch grid=(256,1,1) block=(256,1,1) lds=163840
.amdgcn_target "amdgcn-amd-amdhsa--gfx950"
.text
.globl {NAME}
.p2align 8
.type {NAME},@function
{NAME}:
{body}
L_codeend:
    .fill 512, 4, 0xbf810000
.section .rodata,"a"
.p2align 6
.amdhsa_kernel {NAME}
  .amdhsa_next_free_vgpr 512
  .amdhsa_next_free_sgpr 102
  .amdhsa_accum_offset 256
  .amdhsa_group_segment_fixed_size 0
  .amdhsa_kernarg_size 80
  .amdhsa_user_sgpr_count 2
  .amdhsa_user_sgpr_kernarg_segment_ptr 1
  .amdhsa_system_sgpr_workgroup_id_x 1
  .amdhsa_float_denorm_mode_32 3
.end_amdhsa_kernel
''')
if __name__ == '__main__':
    out = sys.argv[1]
    open(out, 'w').write(build(stamps='--stamps' in sys.argv))
```

```python
import sys, struct, math
from asmlib import *

NAME = 'parallel_sum__spectral_gfnet__glu_gated_swiglu__prompt_kernel'
XB = 2048 * 448 * 2
WB = 2048 * 225 * 2
W1B = 448 * 1792 * 2
WS_E = 0
WS_FX = 4096
WS_FH = 0x20000
WS_FY = 0x70000
WS_ST = 0x80000
WS_X1 = 0x100000
WS_Y = 0x300000
WS_H = 0x500000
WS_SIZE = 0x500000 + 64 * 2 * 4 * 14 * 1024
POLL_MAX = 400000
LOG2E = 1.4426950408889634

def fhex(x): return '0x%08x' % struct.unpack('<I', struct.pack('<f', x))[0]
def v(r, n=1): return f'v{r}' if n == 1 else f'v[{r}:{r+n-1}]'
def a(r, n=1): return f'a{r}' if n == 1 else f'a[{r}:{r+n-1}]'
def s(r, n=1): return f's{r}' if n == 1 else f's[{r}:{r+n-1}]'
def idx0(r): return 8 * (r // 4) + r % 4

sX, sWA, sWB, sWS, sOUT = 24, 28, 32, 36, 40
sW, sI, sJ, sP, sN, sNONCE = 44, 45, 46, 47, 48, 49
sT = 50
sLB = 60
sRB = 61
sSO = 62
sK4, sK8, sK12 = 63, 64, 65
sCNT = 66
sONES, sTWO = 67, 68
sST = 70

class G:
    def __init__(self, stamps=False, probe=None):
        self.stamps = stamps; self.nst = 0; self.uid = 0; self.probe = probe
    def stamp(self):
        if not self.stamps: return []
        r = sST + 2 * self.nst; self.nst += 1
        assert r + 1 <= 101
        return [I(f's_memrealtime {s(r,2)}')]
    def dump_stamps(self, vt, role='g'):
        if not self.stamps: return []
        if self.probe is not None:
            k = self.probe.get(role)
            if k is None: return []
            self.uid += 1
            return [I('s_waitcnt lgkmcnt(0)'), I(f's_add_u32 s{sT}, s{sST+2*k}, 4000'), LABEL(f'L_spin{self.uid}'),
                    I(f's_memrealtime {s(sT+2,2)}'), I('s_waitcnt lgkmcnt(0)'), I(f's_sub_u32 s{sT+4}, s{sT+2}, s{sT}'),
                    I(f's_cmp_lt_i32 s{sT+4}, 0'), I(f's_cbranch_scc1 L_spin{self.uid}')]
        o = [I('s_waitcnt lgkmcnt(0)'),
             I(f's_lshl_b32 s{sT}, s2, 2'), I(f's_add_u32 s{sT}, s{sT}, s{sW}'), I(f's_lshl_b32 s{sT}, s{sT}, 6'),
             I(f's_add_u32 s{sT}, s{sT}, {WS_ST}'), I(f'v_mov_b32 {v(vt)}, 0')]
        for k in range(self.nst):
            o += [I(f'v_mov_b32 {v(vt+1)}, s{sST+2*k}'),
                  I(f'buffer_store_dword {v(vt+1)}, {v(vt)}, {s(sWS,4)}, s{sT} offen offset:{4*k}')]
        return o
    def poll(self, vaddr, vdst, ssoff, pre_issued_tag=None):
        self.uid += 1; u = self.uid
        o = []
        if pre_issued_tag is None:
            o += [I(f'buffer_load_dword {v(vdst)}, {v(vaddr)}, {s(sWS,4)}, {ssoff} offen sc1')]
        o += [I(f'v_cmp_eq_u32 vcc, s{sNONCE}, {v(vdst)}'), I('s_cmp_eq_u64 vcc, -1'), I(f's_cbranch_scc1 L_pd{u}'),
              I(f's_mov_b32 s{sCNT}, 0'),
              LABEL(f'L_pl{u}'),
              RAW(f'    buffer_load_dword {v(vdst)}, {v(vaddr)}, {s(sWS,4)}, {ssoff} offen sc1'),
              RAW(f'    s_add_u32 s{sCNT}, s{sCNT}, 1'), RAW(f'    s_cmp_gt_u32 s{sCNT}, {POLL_MAX}'),
              RAW('    s_waitcnt vmcnt(0)'),
              RAW(f'    s_cbranch_scc1 L_pd{u}'),
              RAW(f'    v_cmp_eq_u32 vcc, s{sNONCE}, {v(vdst)}'), RAW('    s_nop 1'),
              RAW('    s_cmp_eq_u64 vcc, -1'), RAW(f'    s_cbranch_scc0 L_pl{u}'),
              LABEL(f'L_pd{u}')]
        return o
    def flag(self, vzero, vtmp_nonce, soff_expr):
        return soff_expr + [I('s_mov_b64 exec, 1'),
                I(f'buffer_store_dword {v(vtmp_nonce)}, {v(vzero)}, {s(sWS,4)}, s{sSO} offen sc1'),
                I('s_mov_b64 exec, -1')]

    def prologue(self):
        o = [I('s_cmp_ge_u32 s2, 256'), I('s_cbranch_scc1 L_end')]
        o += self.stamp()
        o += [I('s_load_dwordx16 s[4:19], s[0:1], 0'), I('s_load_dwordx4 s[20:23], s[0:1], 64'),
              I('v_lshrrev_b32 v1, 6, v0'), I('v_and_b32 v0, 63, v0'), I(f'v_readfirstlane_b32 s{sW}, v1'),
              I(f's_lshr_b32 s{sT}, s2, 3'), I(f's_and_b32 s{sT+1}, s2, 7')]
        o += [I(f's_lshl_b32 s{sT+2}, s{sT}, 2'), I(f's_add_u32 s{sT+2}, s{sT+2}, s{sW}'),
              I(f's_min_u32 s{sT+2}, s{sT+2}, (L_codeend-L_pc)/1024'), I(f's_lshl_b32 s{sT+2}, s{sT+2}, 10'),
              I(f's_getpc_b64 {s(sT+4,2)}'), LABEL('L_pc'),
              I(f'v_lshlrev_b32 v1, 4, v0'), I(f'v_add_u32 v2, s{sT+2}, v1'),
              I(f'global_load_dwordx4 v[252:255], v2, {s(sT+4,2)}'),
              I(f's_cmp_ge_u32 s{sT}, 28'), I('s_cbranch_scc1 L_fft')]
        return o
    def srd(self, d, p, nbytes):
        return [I(f's_mov_b32 s{d}, s{p}'), I(f's_mov_b32 s{d+1}, s{p+1}'), I(f's_mov_b32 s{d+2}, {nbytes}'), I(f's_mov_b32 s{d+3}, 0x20000')]
    def nonce_load(self): return [I(f's_load_dword s{sNONCE}, s[22:23], {WS_E}')]
    def nonce_fin(self): return [I(f's_mul_i32 s{sNONCE}, s{sNONCE}, 0x9e3779b1'), I(f's_add_u32 s{sNONCE}, s{sNONCE}, 0x7f4a7c15')]

    def gemm(self):
        o = []
        L, L16 = 0, 1
        A_, H_ = 2, 3
        DV = 4
        D2 = 8
        TW = 12
        T2 = 16
        IK2, NON, ZER, HST = 18, 19, 20, 21
        FL, FLD = 22, 23
        X, ACC0, T = 24, 136, 200
        ACC1, SP, AB, W2A = 0, 64, 112, 144
        ABUF = [AB, AB + 16, SP]
        LDS_C, LDS_BN, LDS_R = 114688, 143360, 151552
        t0 = sT
        o += [CMT('---- GEMM workgroup: tile coordinates')]
        o += [I(f's_mul_i32 s{t0+2}, s{t0}, 37'), I(f's_lshr_b32 s{t0+2}, s{t0+2}, 8'),
              I(f's_mul_i32 s{t0+3}, s{t0+2}, 7'), I(f's_sub_u32 s{sN}, s{t0}, s{t0+3}'),
              I(f's_lshr_b32 s{t0+3}, s{t0+1}, 1'), I(f's_lshl_b32 s{t0+3}, s{t0+3}, 2'), I(f's_add_u32 s{sI}, s{t0+3}, s{t0+2}'),
              I(f's_and_b32 s{t0+3}, s{t0+1}, 1'), I(f's_mul_i32 s{t0+3}, s{t0+3}, 7'), I(f's_add_u32 s{sJ}, s{t0+3}, s{sN}'),
              I(f's_lshl_b32 s{t0+3}, s{t0+1}, 2'), I(f's_add_u32 s{sP}, s{t0+3}, s{t0+2}'),
              I(f's_mul_i32 s{sLB}, s{sW}, 28672'), I(f's_mul_i32 s{sRB}, s{sW}, 12288'), I(f's_add_u32 s{sRB}, s{sRB}, {LDS_C}'),
              I(f's_mov_b32 s{sK4}, 4096'), I(f's_mov_b32 s{sK8}, 8192'), I(f's_mov_b32 s{sK12}, 12288'),
              I(f's_mov_b32 s{sONES}, 0x3f803f80'),
              I(f'v_and_b32 {v(A_)}, 31, {v(L)}'), I(f'v_lshrrev_b32 {v(H_)}, 5, {v(L)}'), I(f'v_mov_b32 {v(ZER)}, 0')]
        q0, q1, q2 = T, T + 1, T + 2
        o += [I(f'v_lshrrev_b32 {v(q0)}, 3, {v(L)}'), I(f'v_and_b32 {v(q1)}, 7, {v(L)}'),
              I(f'v_lshrrev_b32 {v(q2)}, 1, {v(q0)}'), I(f'v_xor_b32 {v(q2)}, {v(q2)}, {v(q1)}'), I(f'v_lshlrev_b32 {v(q2)}, 4, {v(q2)}'),
              I(f'v_mul_u32_u24 {v(DV)}, {64*896}, {v(q0)}'),
              I(f's_lshl_b32 s{t0+3}, s{sI}, 2'), I(f's_add_u32 s{t0+3}, s{t0+3}, s{sW}'),
              I(f's_mul_i32 s{t0+4}, s{t0+3}, 896'),
              I(f'v_add_u32 {v(DV)}, s{t0+4}, {v(DV)}'),
              I(f'v_add_u32 {v(DV+1)}, {458752-1024}, {v(DV)}'), I(f'v_add_u32 {v(DV+2)}, {2*(458752-1024)}, {v(DV)}'),
              I(f'v_add_u32 {v(DV+3)}, {3*(458752-1024)}, {v(DV)}'),
              I(f'v_add_u32 {v(DV)}, {v(DV)}, {v(q2)}'), I(f'v_add_u32 {v(DV+2)}, {v(DV+2)}, {v(q2)}'),
              I(f'v_xor_b32 {v(q2)}, 64, {v(q2)}'),
              I(f'v_add_u32 {v(DV+1)}, {v(DV+1)}, {v(q2)}'), I(f'v_add_u32 {v(DV+3)}, {v(DV+3)}, {v(q2)}')]
        kf, n0, B, Aj, tt = T + 4, T + 5, T + 8, T + 6, T + 16
        def red(dst, src):
            return [I(f'v_fmaak_f32 {v(tt)}, {v(src)}, {v(T+7)}, {fhex(0.5/448)}'), I(f'v_floor_f32 {v(tt)}, {v(tt)}'),
                    I(f'v_fmamk_f32 {v(dst)}, {v(tt)}, {fhex(-448.0)}, {v(src)}'), I(f'v_mul_f32 {v(dst)}, {v(dst)}, {v(T+7)}')]
        cg = [I(f'v_mov_b32 {v(T+7)}, {fhex(1.0/448)}'),
              I(f'v_lshrrev_b32 {v(kf)}, 1, {v(A_)}'), I(f's_lshl_b32 s{t0+4}, s{sJ}, 4'), I(f's_add_u32 s{t0+4}, s{t0+4}, 1'),
              I(f'v_add_u32 {v(kf)}, s{t0+4}, {v(kf)}'),
              I(f's_mul_i32 s{t0+4}, s{sW}, 112'),
              I(f'v_lshl_add_u32 {v(n0)}, {v(H_)}, 3, s{t0+4}'), I(f'v_mul_u32_u24 {v(n0)}, {v(n0)}, {v(kf)}'),
              I(f'v_and_b32 {v(tt)}, 1, {v(L)}'), I(f'v_mul_u32_u24 {v(tt)}, 112, {v(tt)}'), I(f'v_add_u32 {v(n0)}, {v(n0)}, {v(tt)}'),
              I(f'v_cvt_f32_u32 {v(kf)}, {v(kf)}'), I(f'v_cvt_f32_u32 {v(n0)}, {v(n0)}')]
        for t in range(1, 8):
            cg += [I(f'v_mul_f32 {v(tt+1)}, {fhex(float(t))}, {v(kf)}')] + red(B + t, tt + 1)
        cw = T + 3
        cg += [I(f's_mul_i32 s{t0+4}, s{sW}, 7168'), I(f's_add_u32 s{t0+4}, s{t0+4}, {LDS_C}'), I(f'v_add_u32 {v(cw)}, s{t0+4}, {v(L16)}')]
        for jj in range(7):
            cg += [I(f'v_fmamk_f32 {v(tt+1)}, {v(kf)}, {fhex(16.0*jj)}, {v(n0)}')] + red(Aj, tt + 1)
            ph = T + 20; ob = T + 28 + 4 * (jj % 2)
            cg += [I(f'v_add_f32 {v(ph+t)}, {v(Aj)}, {v(B+t)}') for t in range(1, 8)]
            cg += [I(f'v_cos_f32 {v(ph)}, {v(Aj)}')] + [I(f'v_cos_f32 {v(ph+t)}, {v(ph+t)}') for t in range(1, 8)]
            cg += [I(f'v_cvt_pk_bf16_f32 {v(ob+u)}, {v(ph+2*u)}, {v(ph+2*u+1)}') for u in range(4)]
            cg += [I(f'ds_write_b128 {v(cw)}, {v(ob,4)} offset:{jj*1024}', tag='cw')]
        split = 75
        o += cg[:split]
        o += [I('s_waitcnt lgkmcnt(0)')] + self.srd(sX, 4, XB)
        for t in range(7):
            o += [I(f's_add_u32 m0, s{sLB}, {t*4096}'), I(f's_mov_b32 s{sSO}, {t*128}')]
            o += [I(f'buffer_load_dwordx4 {v(DV+g)}, {s(sX,4)}, s{sSO} offen offset:{g*1024} lds', tag=f'x{t}') for g in range(4)]
        o += self.stamp()
        o += self.nonce_load()
        o += [I(f's_cmp_ge_u32 s{sW}, 2'), I(f's_cselect_b32 s{sWA}, s14, s12'), I(f's_cselect_b32 s{sWA+1}, s15, s13'),
              I(f's_mov_b32 s{sWA+2}, {W1B}'), I(f's_mov_b32 s{sWA+3}, 0x20000')]
        o += self.srd(sWB, 16, W1B) + self.srd(sWS, 22, WS_SIZE) + self.srd(sOUT, 18, XB)
        o += cg[split:]
        o += [I(f'v_lshlrev_b32 {v(q2)}, 1, {v(q0)}'), I(f'v_and_b32 {v(q2)}, 4, {v(q2)}'), I(f'v_xor_b32 {v(q2)}, {v(q2)}, {v(q1)}'),
              I(f'v_lshlrev_b32 {v(q2)}, 4, {v(q2)}'),
              I(f's_and_b32 s{t0+4}, s{sW}, 1'), I(f's_mul_i32 s{t0+4}, s{t0+4}, {8*3584}'), I(f's_lshl_b32 s{t0+5}, s{sJ}, 8'),
              I(f's_add_u32 s{t0+4}, s{t0+4}, s{t0+5}'),
              I(f'v_mul_u32_u24 {v(DV)}, 3584, {v(q0)}'), I(f'v_add3_u32 {v(DV)}, {v(DV)}, {v(q2)}, s{t0+4}')]
        o += [I(f'v_add_u32 {v(DV+g)}, {g*(57344-1024)}, {v(DV)}') for g in (1, 2, 3)]
        o += [I(f's_mul_i32 s{t0+4}, s{sW}, {16*896}'), I(f's_lshl_b32 s{t0+5}, s{sN}, 7'), I(f's_add_u32 s{t0+4}, s{t0+4}, s{t0+5}'),
              I(f'v_mul_u32_u24 {v(D2)}, 896, {v(q0)}'), I(f'v_add3_u32 {v(D2)}, {v(D2)}, {v(q2)}, s{t0+4}')]
        o += [I(f'v_add_u32 {v(D2+g)}, {(g//2)*114688 + (g%2)*7168 - g*1024}, {v(D2)}') for g in (1, 2, 3)]
        o += [I(f'v_bfe_u32 {v(q0)}, {v(L)}, 2, 2'), I(f'v_bfe_u32 {v(q1)}, {v(L)}, 4, 1'), I(f'v_lshlrev_b32 {v(q1)}, 5, {v(q1)}'),
              I(f'v_and_b32 {v(q2)}, 3, {v(L)}'), I(f'v_lshl_add_u32 {v(q1)}, {v(q2)}, 3, {v(q1)}'),
              I(f'v_and_b32 {v(q2)}, 2, {v(q0)}'), I(f'v_lshl_add_u32 {v(q1)}, {v(q2)}, 5, {v(q1)}'),
              I(f'v_lshl_add_u32 {v(q1)}, {v(q0)}, 7, {v(q1)}'),
              I(f'v_mul_u32_u24 {v(TW)}, 28672, {v(H_)}'), I(f'v_add_u32 {v(TW)}, {v(TW)}, {v(q1)}'),
              I(f'v_xor_b32 {v(TW+1)}, 64, {v(TW)}'),
              I(f'v_add_u32 {v(TW+2)}, 57344, {v(TW)}'), I(f'v_add_u32 {v(TW+3)}, 57344, {v(TW+1)}'),
              I(f'v_lshl_add_u32 {v(T2)}, {v(H_)}, 9, {v(q1)}'), I(f'v_add_u32 {v(T2)}, s{sRB}, {v(T2)}'),
              I(f'v_xor_b32 {v(T2+1)}, 64, {v(T2)}')]
        XR = T + 40
        o += [I(f'v_bfe_u32 {v(q0)}, {v(A_)}, 1, 3'), I(f'v_xor_b32 {v(q0)}, {v(q0)}, {v(H_)}'), I(f'v_lshlrev_b32 {v(q0)}, 4, {v(q0)}'),
              I(f'v_lshl_add_u32 {v(q0)}, {v(A_)}, 7, {v(q0)}'), I(f'v_add_u32 {v(XR)}, s{sLB}, {v(q0)}')]
        o += [I(f'v_xor_b32 {v(XR+u)}, {32*u}, {v(XR)}') for u in (1, 2, 3)]
        o += [I('s_waitcnt lgkmcnt(0)'), I('s_barrier')]
        o += self.nonce_fin() + [I(f'v_mov_b32 {v(NON)}, s{sNONCE}')]
        o += [I(f'v_add_u32 {v(cw)}, {LDS_C}, {v(L16)}')]
        o += [I(f'ds_read_b128 {a(W2A+4*jj,4)}, {v(cw)} offset:{jj*1024}') for jj in range(28)]
        S1, S2 = T + 8, T + 10
        o += [I(f'v_mov_b32 {v(S1+u)}, 0') for u in range(4)]
        o += [CMT('---- x arrives: fragments, row statistics, forward DFT tile on the raw rows')]
        def wdma(t, stage):
            r = [I(f's_add_u32 m0, s{sLB}, {t*4096}'), I(f's_mov_b32 s{sSO}, {t*229376 + stage*128}')]
            return r + [I(f'buffer_load_dwordx4 {v(DV+g)}, {s(sWA,4)}, s{sSO} offen offset:{g*1024} lds', tag=f'W{stage}_{t}') for g in range(4)]
        def xproc(t):
            r = []
            for u in range(16):
                x = X + 16 * t + u
                r += [I(f'v_dot2_f32_bf16 {v(S1+u%2)}, {v(x)}, s{sONES}, {v(S1+u%2)}'), I(f'v_dot2_f32_bf16 {v(S2+u%2)}, {v(x)}, {v(x)}, {v(S2+u%2)}')]
            for u in range(4):
                jj = 4 * t + u
                r += [I(f'v_mfma_f32_32x32x16_bf16 {v(ACC0,16)}, {v(X+4*jj,4)}, {a(W2A+4*jj,4)}, {v(ACC0,16) if jj else 0}')]
            return r
        for t in range(7):
            o += [WAITVM(f'x{t}')]
            if t == 0: o += self.stamp()
            o += [I(f'ds_read_b128 {v(X+16*t+4*u,4)}, {v(XR+u)} offset:{t*4096}') for u in range(4)]
            if t: o += xproc(t - 1)
            o += [WAITREG(v(X + 16 * t, 16))] + wdma(t, 0)
        o += xproc(6)
        o += self.stamp()
        M_, R_, RB, CC = T + 12, T + 13, T + 14, T + 16
        o += [I(f'v_add_f32 {v(S1)}, {v(S1)}, {v(S1+1)}'), I(f'v_add_f32 {v(S2)}, {v(S2)}, {v(S2+1)}'),
              I(f'v_mov_b32 {v(S1+1)}, {v(S1)}'), I(f'v_mov_b32 {v(S2+1)}, {v(S2)}'),
              I(f'v_permlane32_swap_b32 {v(S1)}, {v(S1+1)}'), I(f'v_permlane32_swap_b32 {v(S2)}, {v(S2+1)}'),
              I(f'v_add_f32 {v(S1)}, {v(S1)}, {v(S1+1)}'), I(f'v_add_f32 {v(S2)}, {v(S2)}, {v(S2+1)}'),
              I(f'v_mul_f32 {v(M_)}, {fhex(1.0/448)}, {v(S1)}'), I(f'v_mul_f32 {v(S2)}, {fhex(1.0/448)}, {v(S2)}'),
              I(f'v_fma_f32 {v(S2)}, -{v(M_)}, {v(M_)}, {v(S2)}'), I(f'v_max_f32 {v(S2)}, 0, {v(S2)}'),
              I(f'v_cvt_pk_bf16_f32 {v(S2)}, {v(S2)}, {v(M_)}'), I(f'v_and_b32 {v(M_)}, 0xffff0000, {v(S2)}'),
              I(f'v_lshlrev_b32 {v(S2)}, 16, {v(S2)}'), I(f'v_add_f32 {v(S2)}, {fhex(1e-5)}, {v(S2)}'),
              I(f'v_cvt_pk_bf16_f32 {v(S2)}, {v(S2)}, {v(S2)}'), I(f'v_lshlrev_b32 {v(S2)}, 16, {v(S2)}'),
              I(f'v_sqrt_f32 {v(S2)}, {v(S2)}'),
              I(f'v_cvt_pk_bf16_f32 {v(S2)}, {v(S2)}, {v(S2)}'), I(f'v_lshlrev_b32 {v(S2)}, 16, {v(S2)}'),
              I(f'v_rcp_f32 {v(R_)}, {v(S2)}'),
              I(f's_lshl_b32 s{t0+4}, s{sW}, 7'), I(f's_add_u32 s{t0+4}, s{t0+4}, {LDS_R}'),
              I(f'v_lshl_add_u32 {v(q0)}, {v(A_)}, 2, s{t0+4}'),
              I(f'v_mul_f32 {v(q1)}, {fhex(1.0/256)}, {v(R_)}'),
              I(f'ds_write_b32 {v(q0)}, {v(q1)}', tag='rw'),
              I(f'v_lshl_add_u32 {v(q0)}, {v(H_)}, 4, s{t0+4}')]
        RR = T + 24
        o += [I(f'ds_read_b128 {v(RR+4*g,4)}, {v(q0)} offset:{32*g}') for g in range(4)]
        o += [I(f'v_mul_f32 {v(RB)}, {fhex(LOG2E)}, {v(R_)}'), I(f'v_cvt_pk_bf16_f32 {v(RB)}, {v(RB)}, 0'),
              I(f'v_lshlrev_b32 {v(RB+1)}, 16, {v(RB)}'),
              I(f'v_mul_f32 {v(CC)}, {v(M_)}, {v(RB+1)}'), I(f'v_sub_f32 {v(CC)}, 0, {v(CC)}'),
              I(f'v_mul_f32 {v(IK2)}, {v(RB+1)}, {v(S2)}'), I(f'v_mul_f32 {v(IK2)}, {v(IK2)}, {v(IK2)}')]
        o += [I(f'v_lshl_add_u32 {v(q1)}, {v(H_)}, 2, s{sW}'), I(f'v_and_b32 {v(q2)}, 7, {v(A_)}'), I(f'v_xor_b32 {v(q1)}, {v(q1)}, {v(q2)}'),
              I(f'v_lshlrev_b32 {v(q1)}, 4, {v(q1)}'), I(f'v_lshl_add_u32 {v(q1)}, {v(A_)}, 7, {v(q1)}'), I(f'v_add_u32 {v(q1)}, {LDS_BN}, {v(q1)}')]
        o += [I(f'v_mul_f32 {v(ACC0+r)}, {v(ACC0+r)}, {v(RR+r)}') for r in range(16)]
        o += [I(f'v_cvt_pk_f16_f32 {v(RR+u)}, {v(ACC0+2*u)}, {v(ACC0+2*u+1)}') for u in range(8)]
        o += [I(f'ds_write_b128 {v(q1)}, {v(RR+4*jj,4)} offset:{jj*4096}') for jj in range(2)]
        o += [I(f'v_lshrrev_b32 {v(q0)}, 3, {v(L)}'), I(f'v_xor_b32 {v(q1)}, {v(q0)}, {v(L)}'),
              I(f'v_lshlrev_b32 {v(q1)}, 4, {v(q1)}'), I(f's_lshl_b32 s{t0+4}, s{sW}, 10'), I(f's_add_u32 s{t0+4}, s{t0+4}, {LDS_BN}'),
              I(f'v_add_u32 {v(q1)}, s{t0+4}, {v(q1)}'),
              I(f'v_lshlrev_b32 {v(q0)}, 12, {v(q0)}'), I(f'v_bfe_u32 {v(q2)}, {v(L)}, 2, 1'), I(f'v_lshl_add_u32 {v(q0)}, {v(q2)}, 9, {v(q0)}'),
              I(f'v_and_b32 {v(q2)}, 3, {v(L)}'), I(f'v_lshl_add_u32 {v(q0)}, {v(q2)}, 4, {v(q0)}'),
              I(f's_lshl_b32 s{t0+4}, s{sJ}, 2'), I(f's_add_u32 s{t0+4}, s{t0+4}, s{sW}'),
              I(f's_lshl_b32 s{t0+5}, s{t0+4}, 15'), I(f's_lshr_b32 s{t0+6}, s{sI}, 3'), I(f's_lshl_b32 s{t0+6}, s{t0+6}, 11'),
              I(f's_add_u32 s{t0+5}, s{t0+5}, s{t0+6}'), I(f's_and_b32 s{t0+6}, s{sI}, 7'), I(f's_lshl_b32 s{t0+6}, s{t0+6}, 6'),
              I(f's_add_u32 s{t0+5}, s{t0+5}, s{t0+6}'), I(f's_add_u32 s{t0+5}, s{t0+5}, {WS_X1}'),
              I('s_waitcnt lgkmcnt(0)'), I('s_barrier')]
        o += [I(f'ds_read_b128 {v(RR+8+4*jj,4)}, {v(q1)} offset:{jj*4096}') for jj in range(2)]
        o += [I(f'buffer_store_dwordx4 {v(RR+8+4*jj,4)}, {v(q0)}, {s(sWS,4)}, s{t0+5} offen offset:{jj*1024} sc1', tag='x1st') for jj in range(2)]
        o += self.stamp()
        o += [CMT('---- normalise the rows: x*rb - m*rb, rb = bf16(log2e/sd)')]
        nt = T + 44
        nrm = []
        for u in range(0, 112, 2):
            k = nt + 4 * ((u // 2) % 2)
            row = []
            for z in range(2):
                row += [I(f'v_dot2_f32_bf16 {v(k+2*z)}, {v(X+u+z)}, {v(RB)}, {v(CC)}'), I(f'v_dot2_f32_bf16 {v(k+2*z+1)}, {v(X+u+z)}, {v(RB+1)}, {v(CC)}')]
            cv = [I(f'v_cvt_pk_bf16_f32 {v(X+u+z)}, {v(k+2*z)}, {v(k+2*z+1)}') for z in range(2)]
            nrm.append((row, cv))
        for n_, (row, cv) in enumerate(nrm):
            o += row
            if n_: o += nrm[n_ - 1][1]
        o += nrm[-1][1]
        o += [WAITVM('x1st')]
        o += self.flag(ZER, NON, [I(f's_lshl_b32 s{sSO}, s{t0+4}, 4'), I(f's_add_u32 s{sSO}, s{sSO}, s{sI}'),
                                  I(f's_lshl_b32 s{sSO}, s{sSO}, 7'), I(f's_add_u32 s{sSO}, s{sSO}, {WS_FX}')])
        o += self.stamp()
        o += [I(f's_mul_i32 s{t0+4}, s{t0+3}, 114688'), I(f's_lshl_b32 s{t0+5}, s{sJ}, 10'), I(f's_add_u32 s{t0+4}, s{t0+4}, s{t0+5}'),
              I(f's_add_u32 s{t0+4}, s{t0+4}, {WS_H}'), I(f'v_add_u32 {v(HST)}, s{t0+4}, {v(L16)}'),
              I(f's_lshr_b32 s{t0+4}, s{t0+3}, 1'), I(f's_lshl_b32 s{t0+4}, s{t0+4}, 12'), I(f's_and_b32 s{t0+5}, s{t0+3}, 1'),
              I(f's_mul_i32 s{t0+5}, s{t0+5}, 14'), I(f's_add_u32 s{t0+5}, s{t0+5}, s{sJ}'), I(f's_lshl_b32 s{t0+5}, s{t0+5}, 7'),
              I(f's_add_u32 s{t0+8}, s{t0+4}, s{t0+5}'),
              I(f'v_min_u32 {v(FL)}, 27, {v(L)}'), I(f'v_lshlrev_b32 {v(FL)}, 7, {v(FL)}')]
        sHF = t0 + 8
        def w2dma(t, stage, ldsbase_s, ldsoff):
            r = [I(f's_add_u32 m0, s{ldsbase_s}, {ldsoff}'), I(f's_mov_b32 s{sSO}, {t*229376 + stage*57344}')]
            return r + [I(f'buffer_load_dwordx4 {v(D2+g)}, {s(sWB,4)}, s{sSO} offen offset:{g*1024} lds', tag=f'w2{stage}_{t}') for g in range(4)]
        def w2tr(dst, off, tag=None):
            return [I(f'ds_read_b64_tr_b16 {a(dst+4*ct+2*z,2)}, {v(T2+ct)} offset:{off+1024*z}', tag=tag) for ct in range(2) for z in range(2)]
        def wtr(sg, m):
            mat, ct = m % 2, m // 2
            d = ABUF[sg % 3] + 4 * m
            return [I(f'ds_read_b64_tr_b16 {a(d+2*z,2)}, {v(TW+2*mat+ct)} offset:{(sg%28)*1024+512*z}') for z in range(2)]
        def epilogue(stage):
            r = []
            for ct in range(2):
                ob = T + 8 * ct
                for e in range(0, 16, 2):
                    if stage == 0:
                        g0, u0 = ACC0 + 32 * ct + e, ACC0 + 32 * ct + 16 + e
                    else:
                        g0 = T + 16 + 4 * ((e // 2) % 2); u0 = g0 + 2
                        r += [I(f'v_accvgpr_read_b32 {v(g0+z)}, {a(ACC1+32*ct+e+z)}') for z in range(2)]
                        r += [I(f'v_accvgpr_read_b32 {v(u0+z)}, {a(ACC1+32*ct+16+e+z)}') for z in range(2)]
                    r += [I(f'v_mul_f32 {v(u0+z)}, {v(g0+z)}, {v(u0+z)}') for z in range(2)]
                    r += [I(f'v_exp_f32 {v(g0+z)}, -{v(g0+z)}') for z in range(2)]
                    r += [I(f'v_fma_f32 {v(g0+z)}, {v(g0+z)}, {v(IK2)}, {v(IK2)}') for z in range(2)]
                    r += [I(f'v_rcp_f32 {v(g0+z)}, {v(g0+z)}') for z in range(2)]
                    r += [I(f'v_mul_f32 {v(u0+z)}, {v(u0+z)}, {v(g0+z)}') for z in range(2)]
                    r += [I(f'v_cvt_pk_bf16_f32 {v(ob+e//2)}, {v(u0)}, {v(u0+1)}')]
                    if e in (6, 14):
                        ks = 2 * ct + e // 8
                        r += [I(f's_mov_b32 s{t0+9}, {stage*57344 + ks*14336}'),
                              I(f'buffer_store_dwordx4 {v(ob+4*(e//8),4)}, {v(HST)}, {s(sWS,4)}, s{t0+9} offen sc1', tag=f'h{stage}st')]
            return r
        def hflag(stage):
            return [WAITVM(f'h{stage}st')] + self.flag(ZER, NON, [I(f's_add_u32 s{sSO}, s{sHF}, {WS_FH + stage*131072}')])
        o += [CMT('---- gate/up GEMM: two passes of 64+64 columns, weights streamed through LDS')]
        o += [WAITVM('W0_0'), I('s_barrier')]
        for sg in range(2):
            for m in range(4): o += wtr(sg, m)
        mf, fixed = [], {}
        for sg in range(56):
            stage, k = divmod(sg, 28)
            for m in range(4):
                accr = (v(ACC0 + 16 * m, 16) if stage == 0 else a(ACC1 + 16 * m, 16))
                mf.append(I(f'v_mfma_f32_32x32x16_bf16 {accr}, {a(ABUF[sg%3]+4*m,4)}, {v(X+4*k,4)}, {accr if k else 0}'))
                f = []
                g = (sg + 2) // 4
                if m == 0 and (sg + 2) % 4 == 0 and g < 14:
                    f += [WAITVM(f'W{g//7}_{g%7}'), I('s_barrier')]
                if sg + 2 < 56: f += wtr(sg + 2, m)
                if m == 3 and sg + 1 < 56: f += [WAITREG(a(ABUF[(sg+1)%3], 16))]
                fixed[4 * sg + m] = f
        def put(pos, lst, per=2):
            for n_ in range(0, len(lst), per): fixed[pos + n_ // per] = fixed[pos + n_ // per] + lst[n_:n_ + per]
        Bpos = lambda g: 4 * (4 * g - 2)
        for t in range(7): put(Bpos(t + 2) + 1, wdma(t, 1))
        for t in range(7):
            put(16 * t + 0 if t else 1, w2dma(t, 0, sRB, (t % 3) * 4096))
            rd = [WAITVM(f'w20_{t}')] + w2tr(W2A + 16 * t, (t % 3) * 4096) + w2tr(W2A + 16 * t + 8, (t % 3) * 4096 + 2048)
            put(16 * (t + 2) + 3, rd)
        for t in range(5): put(Bpos(t + 9) + 1, w2dma(t, 1, sLB, t * 4096))
        st0, _ = weave(mf[:112], {i_: fixed[i_] for i_ in range(112)}, [])
        st1, rest = weave(mf[112:], {i_: fixed[i_ + 112] for i_ in range(112)}, epilogue(0), start=3)
        assert not rest, len(rest)
        o += st0 + self.stamp() + st1
        o += hflag(0)
        o += self.stamp()
        o += [I('s_barrier')]
        o += w2dma(5, 1, sLB, 5 * 4096) + w2dma(6, 1, sLB, 6 * 4096)
        o += [CMT('---- second half of h, then the output GEMM: K split over the four waves')]
        o += epilogue(1)
        o += self.stamp()
        HL = DV
        o += [I(f's_mul_i32 s{t0+4}, s{sP}, 229376'), I(f's_mul_i32 s{t0+5}, s{sW}, 14336'), I(f's_add_u32 s{t0+4}, s{t0+4}, s{t0+5}'),
              I(f's_add_u32 s{t0+4}, s{t0+4}, {WS_H}'), I(f'v_add_u32 {v(HL)}, s{t0+4}, {v(L16)}'), I(f'v_add_u32 {v(HL+1)}, 114688, {v(HL)}'),
              I(f's_lshl_b32 s{t0+6}, s{sP}, 12'), I(f's_add_u32 s{t0+6}, s{t0+6}, {WS_FH}')]
        o += self.poll(FL, FLD, f's{t0+6}')
        so4 = ['0', f's{sK4}', f's{sK8}', f's{sK12}']
        for jj in range(14):
            o += [I(f'buffer_load_dwordx4 {v(X+8*jj+4*bi,4)}, {v(HL+bi)}, {s(sWS,4)}, {so4[jj//4]} offen offset:{(jj%4)*1024} sc1') for bi in range(2)]
        o += hflag(1)
        o += self.stamp()
        dd, p0 = DV + 2, TW
        ig = [I(f's_lshl_b32 s{t0+4}, s{sN}, 6'), I(f'v_add_u32 {v(dd)}, s{t0+4}, {v(A_)}'), I(f'v_cvt_f32_u32 {v(dd)}, {v(dd)}'),
              I(f'v_add_f32 {v(dd+1)}, {fhex(32.0)}, {v(dd)}'),
              I(f's_mul_i32 s{t0+4}, s{sW}, 56'), I(f's_add_u32 s{t0+4}, s{t0+4}, 1'), I(f'v_lshl_add_u32 {v(p0+2)}, {v(H_)}, 2, s{t0+4}'),
              I(f'v_cvt_f32_u32 {v(p0+2)}, {v(p0+2)}')]
        for ct in range(2):
            ig += [I(f'v_mul_f32 {v(dd+ct)}, {fhex(1.0/448)}, {v(dd+ct)}'), I(f'v_mul_f32 {v(p0+ct)}, {v(dd+ct)}, {v(p0+2)}'),
                   I(f'v_fract_f32 {v(p0+ct)}, {v(p0+ct)}')]
        o += ig
        IDF = X
        def idgen(mm, ct):
            r = []; ta, tb = D2, D2 + 2
            for u in range(0, 4, 2):
                r += [I(f'v_fmamk_f32 {v(ta+z)}, {v(dd+ct)}, {fhex(8.0*mm+u+z)}, {v(p0+ct)}') for z in range(2)]
                r += [I(f'v_sin_f32 {v(tb+z)}, {v(ta+z)}') for z in range(2)]
                r += [I(f'v_cos_f32 {v(ta+z)}, {v(ta+z)}') for z in range(2)]
                r += [I(f'v_cvt_pk_bf16_f32 {v(IDF+8*mm+4*ct+u+z)}, {v(ta+z)}, -{v(tb+z)}') for z in range(2)]
            return r
        def g2(areg, breg, first=False):
            return [I(f'v_mfma_f32_32x32x16_bf16 {v(ACC0+32*bi+16*ct,16)}, {areg(ct)}, {breg(bi)}, {0 if first else v(ACC0+32*bi+16*ct,16)}')
                    for bi in range(2) for ct in range(2)]
        mf = []
        for jj in range(14): mf += g2(lambda ct: a(W2A + 8 * jj + 4 * ct, 4), lambda bi: v(X + 8 * jj + 4 * bi, 4), jj == 0)
        fill = sum((idgen(mm, ct) for mm in range(7) for ct in range(2)), [])
        st, rest = weave(mf, {}, fill, start=4)
        o += st + rest
        o += self.stamp()
        YL = D2
        o += [I(f's_mul_i32 s{t0+4}, s{sP}, 57344'), I(f's_mul_i32 s{t0+5}, s{sW}, 14336'), I(f's_add_u32 s{t0+4}, s{t0+4}, s{t0+5}'),
              I(f's_add_u32 s{t0+4}, s{t0+4}, {WS_Y}'),
              I(f'v_lshlrev_b32 {v(YL)}, 4, {v(A_)}'), I(f'v_lshl_add_u32 {v(YL)}, {v(H_)}, 10, {v(YL)}'), I(f'v_add_u32 {v(YL)}, s{t0+4}, {v(YL)}'),
              I(f's_add_u32 s{t0+6}, s{t0+6}, 131072'),
              I(f'v_add_u32 {v(HL)}, 57344, {v(HL)}'), I(f'v_add_u32 {v(HL+1)}, 57344, {v(HL+1)}')]
        o += self.poll(FL, FLD, f's{t0+6}')
        for jj in range(14):
            o += [I(f'buffer_load_dwordx4 {a(8*jj+4*bi,4)}, {v(HL+bi)}, {s(sWS,4)}, {so4[jj//4]} offen offset:{(jj%4)*1024} sc1') for bi in range(2)]
        o += self.stamp()
        RX, OA = X + 96, D2 + 1
        o += [I(f's_and_b32 s{t0+4}, s{sW}, 1'), I(f's_mul_i32 s{t0+4}, s{t0+4}, {16*64*896}'),
              I(f's_lshr_b32 s{t0+5}, s{sW}, 1'), I(f's_lshl_b32 s{t0+7}, s{sP}, 1'), I(f's_add_u32 s{t0+5}, s{t0+5}, s{t0+7}'),
              I(f's_mul_i32 s{t0+5}, s{t0+5}, 896'), I(f's_add_u32 s{t0+4}, s{t0+4}, s{t0+5}'),
              I(f's_lshl_b32 s{t0+5}, s{sN}, 7'), I(f's_add_u32 s{t0+4}, s{t0+4}, s{t0+5}'),
              I(f'v_lshrrev_b32 {v(OA)}, 3, {v(L)}'), I(f'v_mul_u32_u24 {v(OA)}, {64*896}, {v(OA)}'),
              I(f'v_and_b32 {v(OA+1)}, 7, {v(L)}'), I(f'v_lshlrev_b32 {v(OA+1)}, 4, {v(OA+1)}'),
              I(f'v_add3_u32 {v(OA)}, {v(OA)}, {v(OA+1)}, s{t0+4}'), I(f'v_add_u32 {v(OA+1)}, {8*64*896}, {v(OA)}')]
        o += [I(f'buffer_load_dwordx4 {v(RX+4*it,4)}, {v(OA+it)}, {s(sX,4)}, 0 offen') for it in range(2)]
        o += [I(f's_sub_u32 s{t0+4}, s{sRB}, s{sLB}'), I(f'v_subrev_u32 {v(T2)}, s{t0+4}, {v(T2)}'), I(f'v_subrev_u32 {v(T2+1)}, s{t0+4}, {v(T2+1)}'),
              WAITVM('w21_6')]
        B2 = [AB, AB + 8, AB + 16]
        o += w2tr(B2[0], 0) + w2tr(B2[1], 2048)
        mf, fixed = [], {}
        for jj in range(14):
            mf += g2(lambda ct: a(B2[jj % 3] + 4 * ct, 4), lambda bi: a(8 * jj + 4 * bi, 4))
            if jj + 2 < 14: fixed[4 * jj] = w2tr(B2[(jj + 2) % 3], (jj + 2) * 2048)
        st, _ = weave(mf, fixed, [])
        o += st
        o += self.stamp()
        o += [I(f's_mul_i32 s{t0+6}, s{sW}, {28*128}'), I(f's_add_u32 s{t0+6}, s{t0+6}, {WS_FY}')]
        o += self.poll(FL, FLD, f's{t0+6}')
        for mm in range(7):
            o += [I(f'buffer_load_dwordx4 {v(T+8*mm+4*z,4)}, {v(YL)}, {s(sWS,4)}, {so4[mm//2]} offen offset:{(mm%2)*2048+512*z} sc1') for z in range(2)]
        o += self.stamp()
        for mm in range(7):
            o += [I(f'v_swap_b32 {v(T+8*mm+2+z)}, {v(T+8*mm+4+z)}') for z in range(2)]
            o += g2(lambda ct: v(IDF + 8 * mm + 4 * ct, 4), lambda bi: v(T + 8 * mm + 4 * bi, 4))
        o += [CMT('---- reduce the four K slices through LDS, add the residual, store')]
        WA = T
        o += [I(f'v_and_b32 {v(WA+4)}, 7, {v(A_)}'), I(f'v_xor_b32 {v(WA+4)}, {v(WA+4)}, {v(H_)}'), I(f'v_lshlrev_b32 {v(WA+4)}, 4, {v(WA+4)}'),
              I(f'v_lshl_add_u32 {v(WA+4)}, {v(A_)}, 8, {v(WA+4)}'), I(f'v_add_u32 {v(WA)}, s{sLB}, {v(WA+4)}')]
        o += [I(f'v_xor_b32 {v(WA+g)}, {32*g}, {v(WA)}') for g in (1, 2, 3)]
        RA = T + 6
        o += [I(f'v_lshrrev_b32 {v(RA+2)}, 3, {v(L)}'), I(f'v_and_b32 {v(RA)}, 7, {v(L)}'), I(f'v_lshlrev_b32 {v(RA)}, 1, {v(RA)}'),
              I(f'v_xor_b32 {v(RA)}, {v(RA)}, {v(RA+2)}'), I(f'v_lshlrev_b32 {v(RA)}, 4, {v(RA)}'),
              I(f'v_lshl_add_u32 {v(RA)}, {v(RA+2)}, 8, {v(RA)}'), I(f's_lshl_b32 s{t0+4}, s{sW}, 12'), I(f'v_add_u32 {v(RA)}, s{t0+4}, {v(RA)}'),
              I(f'v_xor_b32 {v(RA+1)}, 16, {v(RA)}'),
              I(f'v_add_u32 {v(RA+2)}, 57344, {v(RA)}'), I(f'v_add_u32 {v(RA+3)}, 57344, {v(RA+1)}')]
        for bi in range(2):
            for ct in range(2):
                for g in range(4):
                    o += [I(f'ds_write_b128 {v(WA+g)}, {v(ACC0+32*bi+16*ct+4*g,4)} offset:{bi*8192+ct*128}')]
        o += [I('s_waitcnt lgkmcnt(0)'), I('s_barrier')]
        for it in range(2):
            for src in range(4):
                for x_ in range(2):
                    o += [I(f'ds_read_b128 {v(X+32*it+8*src+4*x_,4)}, {v(RA+2*(src//2)+x_)} offset:{(src%2)*28672+it*2048}')]
        for it in range(2):
            b0 = X + 32 * it
            for u in range(4):
                o += [I(f'v_lshlrev_b32 {v(T+16+2*u)}, 16, {v(RX+4*it+u)}'), I(f'v_and_b32 {v(T+17+2*u)}, 0xffff0000, {v(RX+4*it+u)}')]
            for src in range(4):
                o += [I(f'v_pk_add_f32 {v(T+16+2*u,2)}, {v(T+16+2*u,2)}, {v(b0+8*src+2*u,2)}') for u in range(4)]
            o += [I(f'v_cvt_pk_bf16_f32 {v(T+24+4*it+u)}, {v(T+16+2*u)}, {v(T+17+2*u)}') for u in range(4)]
            o += [I(f'buffer_store_dwordx4 {v(T+24+4*it,4)}, {v(OA+it)}, {s(sOUT,4)}, 0 offen')]
        o += [I(f's_or_b32 s{t0+4}, s2, s{sW}'), I(f's_cmp_lg_u32 s{t0+4}, 0'), I('s_cbranch_scc1 L_gdone')]
        o += self.flag(ZER, NON, [I(f's_mov_b32 s{sSO}, {WS_E}')])
        o += [LABEL('L_gdone')]
        o += self.stamp() + self.dump_stamps(T + 40)
        o += [I('s_endpgm')]
        return o

    def fft(self):
        self.nst = 1 if self.stamps else 0
        o = [LABEL('L_fft'), DRAINED(), CMT('---- FFT workgroup: two spectral columns per wave')]
        L, L16, LAM, H_ = 0, 1, 2, 3
        TA, NON, ZER, FL, FLD, YS, MUA, MUB = 4, 5, 6, 7, 8, 9, 10, 11
        q0 = 12
        WIN, OPA, OPB, ACA, ACB = 32, 64, 96, 128, 192
        UIN, FC = 0, 64
        t0 = sT; sM = sI
        o += [I(f's_sub_u32 s{t0+2}, s{t0}, 28'), I(f's_lshl_b32 s{sM}, s{t0+1}, 2'), I(f's_add_u32 s{sM}, s{sM}, s{t0+2}'),
              I(f's_cmp_ge_u32 s{sM}, 28'), I('s_cbranch_scc1 L_end'),
              I(f'v_and_b32 {v(LAM)}, 31, {v(L)}'), I(f'v_lshrrev_b32 {v(H_)}, 5, {v(L)}'), I(f'v_mov_b32 {v(ZER)}, 0'),
              I(f's_mov_b32 s{sTWO}, 0x40004000'),
              I(f's_mov_b32 s{sK4}, 4096'), I(f's_mov_b32 s{sK8}, 8192'), I(f's_mov_b32 s{sK12}, 12288')]
        o += [I(f's_mul_i32 s{t0+2}, s{sW}, {512*450}'), I(f's_lshl_b32 s{t0+3}, s{sM}, 4'), I(f's_add_u32 s{t0+2}, s{t0+2}, s{t0+3}'),
              I(f's_add_u32 s{t0+2}, s{t0+2}, 2'),
              I(f'v_mul_u32_u24 {v(q0)}, 450, {v(L)}'), I(f'v_add_u32 {v(q0)}, s{t0+2}, {v(q0)}'),
              I(f's_lshl_b32 s{sLB}, s{sW}, 13'),
              I('s_waitcnt lgkmcnt(0)')]
        o += self.srd(sWA, 6, WB) + self.srd(sWB, 8, WB) + self.srd(sWS, 22, WS_SIZE) + self.nonce_load()
        for u in range(8):
            for arr in range(2):
                o += [I(f's_add_u32 m0, s{sLB}, {arr*32768 + u*1024}'), I(f's_mov_b32 s{sSO}, {u*64*450}'),
                      I(f'buffer_load_dwordx4 {v(q0)}, {s((sWA,sWB)[arr],4)}, s{sSO} offen lds', tag='wf')]
        o += self.stamp()
        al, be, lf, h4 = q0 + 1, q0 + 2, q0 + 3, q0 + 4
        ph, cs, sn = q0 + 6, q0 + 8, q0 + 10
        o += [I(f'v_cvt_f32_u32 {v(lf)}, {v(LAM)}'), I(f'v_lshlrev_b32 {v(h4)}, 2, {v(H_)}'), I(f'v_cvt_f32_u32 {v(h4)}, {v(h4)}'),
              I(f's_mul_i32 s{t0+2}, s{sW}, 24576'), I(f's_add_u32 s{t0+2}, s{t0+2}, 65536'), I(f'v_add_u32 {v(TA)}, s{t0+2}, {v(L16)}')]
        def table(setup, outc, outs, post=None):
            r = list(setup)
            for rho in range(8):
                r += [I(f'v_fmamk_f32 {v(ph+z)}, {v(al)}, {fhex(float(idx0(2*rho+z)))}, {v(be)}') for z in range(2)]
                r += [I(f'v_cos_f32 {v(cs+z)}, {v(ph+z)}') for z in range(2)] + [I(f'v_sin_f32 {v(sn+z)}, {v(ph+z)}') for z in range(2)]
                r += [I(f'v_cvt_pk_f16_f32 {v(outc(rho))}, {v(cs)}, {v(cs+1)}'), I(f'v_cvt_pk_f16_f32 {v(outs(rho))}, {v(sn)}, {v(sn+1)}')]
                if post: r += post(rho)
            return r
        def consts(base, setup):
            c_, s_ = q0 + 12, q0 + 13
            def post(rho):
                return [I(f'v_accvgpr_write_b32 {a(base+rho)}, {v(c_)}'), I(f'v_accvgpr_write_b32 {a(base+8+rho)}, {v(s_)}'),
                        I(f'v_xor_b32 {v(s_)}, 0x80008000, {v(s_)}'), I(f'v_accvgpr_write_b32 {a(base+16+rho)}, {v(s_)}')]
            return table(setup, lambda rho: c_, lambda rho: s_, post)
        F32, G1F, G1I = FC, FC + 24, FC + 48
        o += consts(F32, [I(f'v_mul_f32 {v(al)}, {fhex(1/32)}, {v(lf)}'), I(f'v_mul_f32 {v(be)}, {v(al)}, {v(h4)}')])
        o += consts(G1I, [I(f'v_fmamk_f32 {v(be)}, {v(lf)}, {fhex(1/64)}, {v(be)}')])
        o += consts(G1F, [I(f'v_add_f32 {v(al)}, {fhex(1/64)}, {v(al)}'), I(f'v_mul_f32 {v(be)}, {v(al)}, {v(h4)}')])
        o += table([I(f'v_mul_f32 {v(al)}, {fhex(1/2048)}, {v(lf)}'), I(f'v_mul_f32 {v(be)}, {v(al)}, {v(h4)}')],
                   lambda rho: WIN + 4 * rho, lambda rho: WIN + 4 * rho + 1)
        o += table([I(f'v_add_f32 {v(al)}, {fhex(1/64)}, {v(al)}'), I(f'v_mul_f32 {v(be)}, {v(al)}, {v(h4)}')],
                   lambda rho: WIN + 4 * rho + 2, lambda rho: WIN + 4 * rho + 3,
                   lambda rho: [I(f'ds_write_b128 {v(TA)}, {v(WIN+4*rho,4)} offset:{16384+rho*1024}')])
        o += table([I(f'v_mul_f32 {v(al)}, {fhex(1/2048)}, {v(lf)}'), I(f'v_add_f32 {v(be)}, {fhex(32.0)}, {v(h4)}'), I(f'v_mul_f32 {v(be)}, {v(al)}, {v(be)}')],
                   lambda rho: WIN + 4 * rho + 2, lambda rho: WIN + 4 * rho + 3)
        o += [I('s_waitcnt lgkmcnt(0)')] + self.nonce_fin() + [I(f'v_mov_b32 {v(NON)}, s{sNONCE}')]
        o += self.stamp()
        ga = q0
        o += [I(f'v_lshlrev_b32 {v(ga)}, 4, {v(LAM)}'), I(f'v_lshl_add_u32 {v(ga)}, {v(H_)}, 12, {v(ga)}'),
              I(f's_lshl_b32 s{t0+2}, s{sW}, 2'), I(f'v_add_u32 {v(ga)}, s{t0+2}, {v(ga)}'),
              WAITVM('wf'), I('s_barrier')]
        o += self.stamp()
        wr = lambda e0, arr, r: ACA + 32 * e0 + 16 * arr + r
        for e0 in range(2):
            for arr in range(2):
                o += [I(f'ds_read_b32 {v(wr(e0,arr,r))}, {v(ga)} offset:{arr*32768 + e0*512 + idx0(r)*1024}') for r in range(16)]
        mx = q0 + 1
        o += [I(f'v_mov_b32 {v(mx)}, 0'), I(f'v_mov_b32 {v(mx+1)}, 0')]
        for u in range(64):
            o += [I(f'v_and_b32 {v(q0+4+u%2)}, 0x7fff7fff, {v(ACA+u)}'), I(f'v_pk_max_u16 {v(mx+u%2)}, {v(mx+u%2)}, {v(q0+4+u%2)}')]
        o += [I(f'v_pk_max_u16 {v(mx)}, {v(mx)}, {v(mx+1)}')]
        for mod in ('quad_perm:[1,0,3,2]', 'quad_perm:[2,3,0,1]', 'row_half_mirror', 'row_mirror'):
            o += [I(f'v_mov_b32_dpp {v(mx+1)}, {v(mx)} {mod} row_mask:0xf bank_mask:0xf'), I(f'v_pk_max_u16 {v(mx)}, {v(mx)}, {v(mx+1)}')]
        o += [I(f'v_mov_b32 {v(mx+1)}, {v(mx)}'), I(f'v_permlane16_swap_b32 {v(mx)}, {v(mx+1)}'), I(f'v_pk_max_u16 {v(mx)}, {v(mx)}, {v(mx+1)}'),
              I(f'v_mov_b32 {v(mx+1)}, {v(mx)}'), I(f'v_permlane32_swap_b32 {v(mx)}, {v(mx+1)}'), I(f'v_pk_max_u16 {v(mx)}, {v(mx)}, {v(mx+1)}')]
        sa, sb = q0 + 4, q0 + 5
        o += [I(f'v_bfe_u32 {v(MUA)}, {v(mx)}, 7, 8'), I(f'v_bfe_u32 {v(MUB)}, {v(mx)}, 23, 8'),
              I(f'v_max_u32 {v(MUA)}, 1, {v(MUA)}'), I(f'v_min_u32 {v(MUA)}, 252, {v(MUA)}'),
              I(f'v_max_u32 {v(MUB)}, 1, {v(MUB)}'), I(f'v_min_u32 {v(MUB)}, 252, {v(MUB)}'),
              I(f'v_sub_u32 {v(sa)}, 253, {v(MUA)}'), I(f'v_lshlrev_b32 {v(sa)}, 7, {v(sa)}'),
              I(f'v_sub_u32 {v(sb)}, 253, {v(MUB)}'), I(f'v_lshlrev_b32 {v(sb)}, 23, {v(sb)}'),
              I(f'v_add_u32 {v(MUA)}, 1, {v(MUA)}'), I(f'v_lshlrev_b32 {v(MUA)}, 23, {v(MUA)}'),
              I(f'v_add_u32 {v(MUB)}, 1, {v(MUB)}'), I(f'v_lshlrev_b32 {v(MUB)}, 23, {v(MUB)}'),
              I(f's_lshl_b32 s{t0+2}, s{sM}, 2'), I(f's_add_u32 s{t0+8}, s{t0+2}, s{sW}'),
              I(f's_cmp_eq_u32 s{t0+8}, 111'), I(f's_mov_b32 s{t0+3}, {fhex(1/1792)}'),
              I(f's_cselect_b32 s{t0+2}, {fhex(0.5/1792)}, s{t0+3}'),
              I(f'v_mul_f32 {v(MUA)}, s{t0+3}, {v(MUA)}'), I(f'v_mul_f32 {v(MUB)}, s{t0+2}, {v(MUB)}')]
        for col, sc in enumerate((sa, sb)):
            for rho in range(8):
                tb = ACB + 16 * (rho % 2); ob = tb + 8
                for e0 in range(2):
                    for arr in range(2):
                        o += [I(f'v_dot2_f32_bf16 {v(tb+4*e0+2*arr+z)}, {v(wr(e0,arr,2*rho+z))}, {v(sc)}, 0') for z in range(2)]
                o += [I(f'v_cvt_pk_f16_f32 {v(ob+u)}, {v(tb+2*u)}, {v(tb+2*u+1)}') for u in range(4)]
                o += [I(f'ds_write_b128 {v(TA)}, {v(ob,4)} offset:{col*8192+rho*1024}')]
        o += [I(f'v_min_u32 {v(FL)}, 15, {v(L)}'), I(f'v_lshlrev_b32 {v(FL)}, 7, {v(FL)}'),
              I(f's_lshr_b32 s{t0+2}, s{t0+8}, 1'), I(f's_lshl_b32 s{t0+2}, s{t0+2}, 11'), I(f's_add_u32 s{t0+2}, s{t0+2}, {WS_FX}'),
              I(f's_lshl_b32 s{t0+3}, s{t0+8}, 14'), I(f's_add_u32 s{t0+3}, s{t0+3}, {WS_X1}'), I(f'v_add_u32 {v(q0)}, s{t0+3}, {v(L16)}'),
              I(f's_lshl_b32 s{t0+3}, s{t0+8}, 9'), I(f's_add_u32 s{t0+3}, s{t0+3}, {WS_Y}'),
              I(f'v_mul_u32_u24 {v(YS)}, {2*57344}, {v(H_)}'), I(f'v_lshl_add_u32 {v(YS)}, {v(LAM)}, 4, {v(YS)}'), I(f'v_add_u32 {v(YS)}, s{t0+3}, {v(YS)}')]
        o += self.stamp()
        o += self.poll(FL, FLD, f's{t0+2}')
        o += self.stamp()
        so4 = ['0', f's{sK4}', f's{sK8}', f's{sK12}']
        for col in range(2):
            for b1 in range(2):
                for pl in range(2):
                    for jj in range(2):
                        o += [I(f'buffer_load_dwordx4 {a(UIN+32*col+16*pl+8*b1+4*jj,4)}, {v(q0)}, {s(sWS,4)}, {so4[2*col+pl]} offen offset:{b1*2048+jj*1024} sc1')]
        AC = (ACA, ACB); OP = (OPA, OPB)
        def mm(D, terms, data_is_a, c0=None):
            r = []; first = True
            for dat, con in terms:
                for jj in range(2):
                    x_, y_ = dat(jj), a(con + 4 * jj, 4)
                    if not data_is_a: x_, y_ = y_, x_
                    c_ = (v(c0, 16) if c0 is not None else 0) if first else v(D, 16)
                    r.append(I(f'v_mfma_f32_32x32x16_f16 {v(D,16)}, {x_}, {y_}, {c_}')); first = False
            return r
        def cplx(Dr, Di, re, im, K, fwd, data_is_a, cr=None, ci=None):
            c_, s_, n_ = K, K + 8, K + 16
            if fwd: return mm(Dr, [(re, c_), (im, s_)], data_is_a, cr) + mm(Di, [(im, c_), (re, n_)], data_is_a, ci)
            return mm(Dr, [(re, c_), (im, n_)], data_is_a, cr) + mm(Di, [(im, c_), (re, s_)], data_is_a, ci)
        opf = lambda c, t: (lambda jj: v(OP[c] + 8 * t + 4 * jj, 4))
        def M1(c):
            r = []
            for b1 in range(2):
                r += cplx(AC[c] + 32 * b1, AC[c] + 32 * b1 + 16, lambda jj: a(UIN + 32 * c + 8 * b1 + 4 * jj, 4),
                          lambda jj: a(UIN + 32 * c + 16 + 8 * b1 + 4 * jj, 4), F32, True, True)
            return r
        def M3(c): return cplx(AC[c], AC[c] + 16, opf(c, 0), opf(c, 1), F32, True, False) + cplx(AC[c] + 32, AC[c] + 48, opf(c, 2), opf(c, 3), G1F, True, False)
        def M4(c): return cplx(AC[c], AC[c] + 16, opf(c, 0), opf(c, 1), F32, False, True) + cplx(AC[c] + 32, AC[c] + 48, opf(c, 2), opf(c, 3), G1I, False, True, AC[c], AC[c] + 16)
        def M6(c): return cplx(AC[c], AC[c] + 16, opf(c, 0), opf(c, 1), F32, False, True) + cplx(AC[c] + 32, AC[c] + 48, opf(c, 2), opf(c, 3), F32, False, True)
        N0 = 'neg_lo:[1,0,0] neg_hi:[1,0,0]'; N2 = 'neg_lo:[0,0,1] neg_hi:[0,0,1]'
        def P(kind, c, reload=None):
            r = []
            for rho in range(8):
                A, B, C, D = (q0 + 8 * (rho % 2) + u for u in range(4)); E, F_ = D + 1, D + 2
                c0, s0, c1, s1 = (WIN + 4 * rho + u for u in range(4))
                o0, o1, o2, o3 = (OP[c] + 8 * t + rho for t in range(4))
                r += [I(f'v_cvt_pk_f16_f32 {v(A+t)}, {v(AC[c]+16*t+2*rho)}, {v(AC[c]+16*t+2*rho+1)}') for t in range(4)]
                if kind == 1:
                    r += [I(f'v_pk_mul_f16 {v(E)}, {v(A)}, {v(c0)}'), I(f'v_pk_mul_f16 {v(F_)}, {v(B)}, {v(c0)}'),
                          I(f'v_pk_fma_f16 {v(E)}, {v(B)}, {v(s0)}, {v(E)}'), I(f'v_pk_fma_f16 {v(F_)}, {v(A)}, {v(s0)}, {v(F_)} {N0}'),
                          I(f'v_pk_fma_f16 {v(o0)}, {v(C)}, {v(c1)}, {v(E)}'), I(f'v_pk_fma_f16 {v(o1)}, {v(D)}, {v(c1)}, {v(F_)}'),
                          I(f'v_pk_fma_f16 {v(o0)}, {v(D)}, {v(s1)}, {v(o0)}'), I(f'v_pk_fma_f16 {v(o1)}, {v(C)}, {v(s1)}, {v(o1)} {N0}'),
                          I(f'v_pk_fma_f16 {v(o2)}, {v(E)}, s{sTWO}, {v(o0)} {N2}'), I(f'v_pk_fma_f16 {v(o3)}, {v(F_)}, s{sTWO}, {v(o1)} {N2}')]
                else:
                    if kind == 3:
                        r += [I(f'v_pk_fma_f16 {v(A)}, {v(A)}, s{sTWO}, {v(C)} {N2}'), I(f'v_pk_fma_f16 {v(B)}, {v(B)}, s{sTWO}, {v(D)} {N2}')]
                        A, B, C, D = C, D, A, B
                    r += [I(f'v_pk_mul_f16 {v(o0)}, {v(A)}, {v(c0)}'), I(f'v_pk_mul_f16 {v(o1)}, {v(B)}, {v(c0)}'),
                          I(f'v_pk_mul_f16 {v(o2)}, {v(C)}, {v(c1)}'), I(f'v_pk_mul_f16 {v(o3)}, {v(D)}, {v(c1)}'),
                          I(f'v_pk_fma_f16 {v(o0)}, {v(B)}, {v(s0)}, {v(o0)} {N0}'), I(f'v_pk_fma_f16 {v(o1)}, {v(A)}, {v(s0)}, {v(o1)}'),
                          I(f'v_pk_fma_f16 {v(o2)}, {v(D)}, {v(s1)}, {v(o2)} {N0}'), I(f'v_pk_fma_f16 {v(o3)}, {v(C)}, {v(s1)}, {v(o3)}')]
                if reload is not None: r += [I(f'ds_read_b128 {v(WIN+4*rho,4)}, {v(TA)} offset:{reload+rho*1024}')]
            return r
        outq = lambda b1, u: (WIN if b1 == 0 else OPA) + 4 * u
        def Fin(c, store):
            r = []; mu = (MUA, MUB)[c]
            for b1 in range(2):
                for u in range(8):
                    re, im = AC[c] + 32 * b1 + 2 * u, AC[c] + 32 * b1 + 16 + 2 * u
                    r += [I(f'v_mul_f32 {v(x_)}, {v(x_)}, {v(mu)}') for x_ in (re, im, re + 1, im + 1)]
                    r += [I(f'v_cvt_pk_bf16_f32 {v(outq(b1,u)+2*z+c)}, {v(re+z)}, {v(im+z)}') for z in range(2)]
                    if store:
                        pp = 16 * b1 + 4 * (u // 2) + u % 2
                        r += [I(f's_mov_b32 s{sSO}, {pp*57344}'),
                              I(f'buffer_store_dwordx4 {v(outq(b1,u),4)}, {v(YS)}, {s(sWS,4)}, s{sSO} offen sc1', tag='yst')]
            return r
        def phase(ms, vs):
            per = -(-sum(cost(x) for x in vs) // 14)
            st, rest = weave(ms, {}, vs, budget=max(6, per), start=2)
            return st + rest
        o += M1(0)
        o += phase(M1(1), P(1, 0)) + phase(M3(0), P(1, 1, 0)) + phase(M3(1), P(2, 0, 8192)) + phase(M4(0), P(2, 1, 16384))
        o += phase(M4(1), P(3, 0)) + phase(M6(0), P(3, 1)) + phase(M6(1), Fin(0, False)) + Fin(1, True)
        o += self.stamp()
        o += [WAITVM('yst')]
        o += self.flag(ZER, NON, [I(f's_lshl_b32 s{sSO}, s{t0+8}, 7'), I(f's_add_u32 s{sSO}, s{sSO}, {WS_FY}')])
        o += self.stamp() + self.dump_stamps(q0, 'f')
        o += [LABEL('L_end'), I('s_endpgm')]
        return o

NSTAMPS = dict(gemm=15, fft=8)
HEADER = open(__file__.replace('gen.py', 'header.txt')).read()
def build(stamps=False, probe=None):
    g = G(stamps, probe)
    f = Finalizer()
    f.run(g.prologue() + g.gemm())
    n1 = f.nins; nop1 = f.nnop; ns1 = g.nst
    f.hist = []
    f.run(g.fft())
    sys.stderr.write(f'gemm ins {n1} (nops {nop1}), fft ins {f.nins-n1} (nops {f.nnop-nop1}) stamps {ns1} {g.nst}\n')
    body = '\n'.join(f.out)
    return (HEADER + f'''; @launch grid=(256,1,1) block=(256,1,1) lds=163840
.amdgcn_target "amdgcn-amd-amdhsa--gfx950"
.text
.globl {NAME}
.p2align 8
.type {NAME},@function
{NAME}:
{body}
L_codeend:
    .fill 512, 4, 0xbf810000
.section .rodata,"a"
.p2align 6
.amdhsa_kernel {NAME}
  .amdhsa_next_free_vgpr 512
  .amdhsa_next_free_sgpr 102
  .amdhsa_accum_offset 256
  .amdhsa_group_segment_fixed_size 0
  .amdhsa_kernarg_size 80
  .amdhsa_user_sgpr_count 2
  .amdhsa_user_sgpr_kernarg_segment_ptr 1
  .amdhsa_system_sgpr_workgroup_id_x 1
  .amdhsa_float_denorm_mode_32 3
.end_amdhsa_kernel
''')
if __name__ == '__main__':
    out = sys.argv[1]
    probe = None
    for x in sys.argv:
        if x.startswith('--probe='): probe = {x[8]: int(x[9:])}
    open(out, 'w').write(build(stamps='--stamps' in sys.argv or probe is not None, probe=probe))
```
